```python
import torch

def _softmax(x, axis=-1):
    return torch.softmax(x, dim=axis)
def _gelu(x):
    return torch.nn.functional.gelu(x, approximate="tanh")
def _silu(x):
    return torch.nn.functional.silu(x)
def _sigmoid(x):
    return torch.sigmoid(x)
def _layernorm(x, axis=-1, eps=1e-5):
    m = x.mean(dim=axis, keepdim=True)
    v = x.var(dim=axis, keepdim=True, unbiased=False)
    return (x - m) / torch.sqrt(v + eps)
def _scatter_add(tgt, idx, src, axis=0):
    return tgt.clone().index_add_(axis, idx, src)
def _segment_sum(src, seg, n):
    out = torch.zeros((n,) + src.shape[1:], dtype=src.dtype)
    return out.index_add_(0, seg, src)
def _pad(x, pw):
    flat = tuple(v for pair in reversed(pw) for v in pair)
    return torch.nn.functional.pad(x, flat)

kernel_name = 'sequential_preLN__sliding_block__mixer_token_mlp__prompt'

def setup_inputs():

    _w = (lambda a: (lambda t: t.to(torch.bfloat16) if t.is_floating_point() else t)(torch.as_tensor(a)))
    def _A_setup():
        B, S, D = 1, 2048, 512
        return {
            "x": _w((lambda *s: torch.randn(*s, dtype=torch.bfloat16) * 0.05)(B, S, D)),
            "wqkv": _w((lambda *s: torch.randn(*s, dtype=torch.bfloat16) * 0.05)(D, 3 * D)),
            "wo": _w((lambda *s: torch.randn(*s, dtype=torch.bfloat16) * 0.05)(D, D)),
        }
    _A_in = _A_setup()

    def _B_setup():
        B, S, D, F = 1, 2048, 512, 1376
        return {
            "x": _w((lambda *s: torch.randn(*s, dtype=torch.bfloat16) * 0.05)(B, S, D)),
            "w1": _w((lambda *s: torch.randn(*s, dtype=torch.bfloat16) * 0.8)(S, F) * (S ** -0.5)),
            "b1": _w((lambda *s: torch.randn(*s, dtype=torch.bfloat16) * 0.8)(F) * 0.02),
            "w2": _w((lambda *s: torch.randn(*s, dtype=torch.bfloat16) * 0.8)(F, S) * (F ** -0.5)),
            "b2": _w((lambda *s: torch.randn(*s, dtype=torch.bfloat16) * 0.8)(S) * 0.02),
        }
    _B_in = _B_setup()

    return {
        "A_x": _A_in["x"],
        "A_wqkv": _A_in["wqkv"],
        "A_wo": _A_in["wo"],
        "B_x": _B_in["x"],
        "B_w1": _B_in["w1"],
        "B_b1": _B_in["b1"],
        "B_w2": _B_in["w2"],
        "B_b2": _B_in["b2"],
    }

def reference(A_x, A_wqkv, A_wo, B_x, B_w1, B_b1, B_w2, B_b2):
    def _A_ref(x, wqkv, wo):
        B, S, D = x.shape
        H = 32; Dh = D // H; W = 256
        qkv = (lambda x, *d: x.permute(*d))((x @ wqkv).reshape(B, S, 3, H, Dh), 2, 0, 3, 1, 4)
        q, k, v = qkv[0], qkv[1], qkv[2]
        scores = torch.einsum("bhqd,bhkd->bhqk", q, k) * (Dh ** -0.5)
        idx = torch.arange(S)
        mask = (idx[:, None] - idx[None, :] >= 0) & (idx[:, None] - idx[None, :] < W)
        scores = torch.where(mask[None, None], scores, -1e9)
        p = _softmax(scores, axis=-1)
        o = torch.einsum("bhqk,bhkd->bhqd", p, v)
        return (lambda x, *d: x.permute(*d))(o, 0, 2, 1, 3).reshape(B, S, D) @ wo

    def _B_ref(x, w1, b1, w2, b2):
        B, S, D = x.shape
        h = _layernorm(x, axis=-1)
        u = torch.einsum("bsd,sf->bdf", h, w1) + b1
        u = _gelu(u)
        y = torch.einsum("bdf,fs->bds", u, w2) + b2
        return (lambda x, *d: x.permute(*d))(y, 0, 2, 1)

    x = A_x
    h = x + _A_ref(_layernorm(x, axis=-1), A_wqkv, A_wo)
    h2 = h + _B_ref(_layernorm(h, axis=-1), B_w1, B_b1, B_w2, B_b2)
    return h2
```

```python
import re
TRANS = re.compile(r"v_(exp|log|rcp|rsq|sqrt|sin|cos)_")
REG = re.compile(r"\b([vas])(\d+)\b|\b([vas])\[(\d+):(\d+)\]|\b(vcc|exec|m0)(_lo|_hi)?\b")
def regs(op):
    out = set()
    for m in REG.finditer(op):
        if m.group(1): out.add((m.group(1), int(m.group(2))))
        elif m.group(3):
            for i in range(int(m.group(4)), int(m.group(5)) + 1): out.add((m.group(3), i))
        else: out.add((m.group(6), 0))
    return out
def split_ops(s):
    ops, cur, d = [], "", 0
    for ch in s:
        if ch in "[(": d += 1
        if ch in "])": d -= 1
        if ch == "," and d == 0: ops.append(cur.strip()); cur = ""
        else: cur += ch
    if cur.strip(): ops.append(cur.strip())
    return ops
class I:
    def __init__(self, text):
        self.text = text
        t = text.split(";")[0].strip()
        self.label = None; self.kind = "none"; self.w = set(); self.r = set(); self.states = 0
        self.mn = ""; self.target = None; self.A = self.B = self.C = set(); self.passes = 0
        if not t or t.startswith("."): return
        if t.endswith(":"): self.label = t[:-1]; self.kind = "label"; return
        p = t.split(None, 1); mn = p[0]; self.mn = mn
        rest = p[1] if len(p) > 1 else ""
        ops = split_ops(rest)
        self.states = 1
        if mn == "s_nop": self.states = int(rest, 0) + 1; self.kind = "nop"; return
        if mn.startswith("v_mfma"):
            self.kind = "mfma"; self.w = regs(ops[0]); self.A = regs(ops[1]); self.B = regs(ops[2]); self.C = regs(ops[3].split()[0])
            self.r = self.A | self.B | self.C
            self.passes = 8 if "32x32x16" in mn else 4 if "16x16x32" in mn else None
            assert self.passes, mn
            return
        if mn.startswith("v_"):
            self.kind = "valu"; self.trans = bool(TRANS.match(mn)); self.dl = mn.startswith("v_dot")
            self.dpp = bool(re.search(r"row_|quad_perm|wave_|bank_mask", rest))
            allr = [regs(o) for o in ops]
            if "permlane" in mn and "swap" in mn:
                self.w = allr[0] | allr[1]; self.r = set(self.w)
            elif mn.startswith("v_cmpx"):
                self.w = allr[0] | {("exec", 0)}; self.r = set().union(*allr[1:])
            elif re.match(r"v_(add|sub|subrev|addc|subb)_co", mn):
                self.w = allr[0] | allr[1]; self.r = set().union(*allr[2:])
            else:
                self.w = allr[0]; self.r = set().union(*allr[1:]) if len(allr) > 1 else set()
                if re.match(r"v_(fmac|dot2c|mac|pk_fmac|writelane)", mn) or self.dpp: self.r |= allr[0]
                if mn.startswith("v_cndmask") and len(ops) == 3: self.r |= {("vcc", 0)}
            return
        if mn.startswith("buffer_") or mn.startswith("global_"):
            self.kind = "vmem"; self.lds = bool(re.search(r"\blds\b", rest)) or "load_lds" in mn
            allr = [regs(o) for o in ops]
            self.store = "store" in mn or "atomic" in mn
            self.data = set()
            if mn in ("buffer_wbl2", "buffer_inv"): return
            if self.lds: self.r = set().union(*allr) | {("m0", 0)}
            elif "load" in mn: self.w = allr[0]; self.r = set().union(*allr[1:])
            else:
                self.r = set().union(*allr)
                self.data = allr[0] if mn.startswith("buffer_") else allr[1]
                self.wide = bool(re.search(r"x3|x4", mn))
            return
        if mn.startswith("ds_"):
            self.kind = "ds"; allr = [regs(o) for o in ops]
            if "read" in mn or "permute" in mn or "swizzle" in mn or "_rtn" in mn: self.w = allr[0]; self.r = set().union(*allr[1:])
            else: self.r = set().union(*allr)
            return
        if mn.startswith("s_"):
            self.kind = "salu"
            if mn.startswith("s_cbranch") or mn == "s_branch": self.target = ops[0]; self.kind = "branch"; return
            if mn in ("s_waitcnt", "s_barrier", "s_endpgm", "s_sleep", "s_setprio"): return
            allr = [regs(o) for o in ops]
            if mn.startswith("s_cmp") or mn.startswith("s_bitcmp"): self.r = set().union(*allr)
            else:
                self.w = allr[0] if allr else set(); self.r = set().union(*allr[1:]) if len(allr) > 1 else set()
                if "saveexec" in mn: self.w |= {("exec", 0)}
            return
        raise ValueError("unknown instr: " + text)
def vg(s): return {x for x in s if x[0] in "va" and len(x[0]) == 1}
def sg(s): return {x for x in s if x[0] in ("s", "vcc")}
def need(p, c):
    n = 0
    if p.kind == "mfma":
        big = {8: 12, 4: 8}[p.passes]; mid = {8: 10, 4: 6}[p.passes]
        if c.kind == "mfma":
            if p.w & (c.A | c.B): n = max(n, big)
            if p.w & c.C and not (p.w == c.C and p.passes == c.passes): n = max(n, mid)
            if p.w & c.w and not (p.w == c.C and p.passes == c.passes): n = max(n, mid)
        elif c.kind in ("valu", "vmem", "ds"):
            if p.w & (c.r | c.w): n = max(n, big)
            if c.kind == "valu" and p.C & c.w: n = max(n, {8: 7, 4: 3}[p.passes])
    elif p.kind == "valu":
        wv = vg(p.w); wsg = sg(p.w)
        if c.kind == "mfma":
            if wv & c.r: n = max(n, 3 if p.dl else 2)
            if ("exec", 0) in p.w: n = max(n, 4)
        if c.kind == "valu":
            if p.trans and not c.trans and wv & c.r: n = max(n, 1)
            if p.dl and wv & (c.r | c.w):
                if not (c.mn == p.mn and not (wv & (regs(split_ops(c.text.split(";")[0].split(None,1)[1])[1]) | regs(split_ops(c.text.split(";")[0].split(None,1)[1])[2])))): n = max(n, 3)
            if wsg & c.r: n = max(n, 4 if re.match(r"v_(readlane|writelane)", c.mn) else 2)
            if re.match(r"v_read(first)?lane", c.mn) and wv & c.r: n = max(n, 1)
            if "permlane" in c.mn and wv & c.r: n = max(n, 2)
            if c.dpp and wv & c.r: n = max(n, 2)
            if ("exec", 0) in p.w: n = max(n, 5 if c.dpp else 4 if re.match(r"v_(read|write|perm)lane|v_readfirst", c.mn) else 0)
            if "op_sel" in p.text and not p.mn.startswith("v_pk_") and wv & c.r: n = max(n, 1)
        if c.kind == "vmem" and wsg & c.r: n = max(n, 5)
        if c.kind in ("vmem", "ds") and p.dl and wv & c.r: n = max(n, 3)
        if c.kind in ("vmem", "ds") and p.trans and wv & c.r: n = max(n, 1)
    elif p.kind == "salu":
        if ("m0", 0) in p.w and c.kind == "vmem" and c.lds: n = max(n, 1)
    elif p.kind == "vmem":
        if p.store and getattr(p, "wide", False) and p.data & c.w: n = max(n, 2 if c.kind in ("valu", "mfma") else 1)
    return n
def fix(lines, verbose=False):
    ins = [I(l) for l in lines]
    total = 0
    i = 0
    def build():
        lab = {x.label: k for k, x in enumerate(ins) if x.label}
        jumps = {}
        for k, x in enumerate(ins):
            if x.kind == "branch": jumps.setdefault(lab[x.target], []).append(k)
        return jumps
    changed = True
    while changed:
        changed = False
        jumps = build()
        i = 0
        while i < len(ins):
            c = ins[i]
            if c.kind in ("mfma", "valu", "vmem", "ds"):
                deficit = 0
                stack = [(i, 0)]; seen = {}
                while stack:
                    k, d = stack.pop()
                    preds = []
                    if k > 0:
                        q = ins[k - 1]
                        if not (q.mn in ("s_branch", "s_endpgm")): preds.append(k - 1)
                    if ins[k].kind == "label": preds += jumps.get(k, [])
                    for pk in preds:
                        p = ins[pk]
                        if pk in seen and seen[pk] <= d: continue
                        seen[pk] = d
                        nd = need(p, c) if p.states else 0
                        if nd > d: deficit = max(deficit, nd - d)
                        if d + p.states < 12: stack.append((pk, d + p.states))
                if deficit:
                    ins.insert(i, I(f"    s_nop {deficit-1}   ; hz"))
                    total += deficit; changed = True
                    if verbose: print("hz: +%d before: %s" % (deficit, c.text.strip()))
                    jumps = build()
                    i += 1
            i += 1
    return [x.text for x in ins], total
```

```python
import sys, struct
import hz
NAME = "sequential_preLN__sliding_block__mixer_token_mlp__prompt"
PROF = "--prof" in sys.argv
L = []
def e(s): L.append("    " + s)
def lab(s): L.append(s + ":")
def cmt(s): L.append("    ; " + s)
def vr(a, n=1): return f"v{a}" if n == 1 else f"v[{a}:{a+n-1}]"
def ar(a, n=1): return f"a{a}" if n == 1 else f"a[{a}:{a+n-1}]"
def sr(a, n=1): return f"s{a}" if n == 1 else f"s[{a}:{a+n-1}]"
def f32(x): return "0x%08x" % struct.unpack("<I", struct.pack("<f", x))[0]
def mfma32(d, a, b, c): e(f"v_mfma_f32_32x32x16_bf16 {d}, {a}, {b}, {c}")
def mfma16(d, a, b, c): e(f"v_mfma_f32_16x16x32_bf16 {d}, {a}, {b}, {c}")
_uid = [0]
def uid(p):
    _uid[0] += 1
    return f"L{p}_{_uid[0]}"

F_KV, F_O, F_HN, F_U, F_W1 = 0x20000, 0x40000, 0x60000, 0x80000, 0xA0000
KV, OB, HN, UB, W1P, ST, PR = 0x100000, 0x500000, 0x700000, 0x900000, 0xB00000, 0x1100000, 0x1180000
WS_BYTES = 0x1200000
SX, SWQKV, SWO, SW1, SW2, SOUT, SWS, SB1, SB2 = 8, 12, 16, 20, 24, 28, 32, 36, 40
sEp, sW, sRb, sCq, sFb, sDt = 44, 45, 46, 47, 48, 49
sT0, sT1, sT2, sT3, sT4, sT5, sT6, sT7 = 50, 51, 52, 53, 54, 55, 56, 57
sLo, sHi = 58, 59
sC, sSlot = 60, 61
sMask = 64
sTime = 96
vL16, vEp, vLane, vZero, vTmp, vTmp2, vTmp3 = 1, 2, 3, 4, 5, 6, 7

def stamp(i):
    if not PROF: return
    e(f"s_memrealtime {sr(sTime,2)}")
    e("s_waitcnt lgkmcnt(0)")
    e(f"v_writelane_b32 v255, {sr(sTime)}, {i}")

def publish(soff, nafter=0):
    e(f"s_waitcnt vmcnt({nafter})")
    e("s_mov_b64 exec, 1")
    e(f"buffer_store_dword {vr(vEp)}, {vr(vZero)}, {sr(SWS,4)}, {sr(soff)} offen sc1")
    e("s_mov_b64 exec, -1")

SPIN = 20000
def spin_head():
    l = uid("poll")
    e(f"s_mov_b32 s99, {SPIN}")
    lab(l)
    return l
def spin_tail(l):
    e("s_sub_u32 s99, s99, 1")
    e(f"s_cbranch_scc1 {l}x")
    e(f"s_cbranch_vccnz {l}")
    lab(l + "x")
def poll(voff, soff):
    l = spin_head()
    e(f"buffer_load_dword {vr(vTmp)}, {vr(voff)}, {sr(SWS,4)}, {sr(soff)} offen sc1")
    e("s_waitcnt vmcnt(0)")
    e(f"v_cmp_ne_u32 vcc, {vr(vTmp)}, {vr(vEp)}")
    spin_tail(l)

def halfsum(v, t, op="v_add_f32"):
    e(f"v_mov_b32 {vr(t)}, {vr(v)}")
    e(f"v_permlane32_swap_b32 {vr(v)}, {vr(t)}")
    e(f"{op} {vr(v)}, {vr(v)}, {vr(t)}")

def dma(voff, srd, soff, m0base, m0imm, off=0, fl=""):
    imm = m0imm - off
    if m0base is None: e(f"s_mov_b32 m0, {imm}")
    elif imm >= 0: e(f"s_add_u32 m0, {sr(m0base)}, {imm}")
    else: e(f"s_sub_u32 m0, {sr(m0base)}, {-imm}")
    o = f" offset:{off}" if off else ""
    e(f"buffer_load_dwordx4 {vr(voff)}, {sr(srd,4)}, {sr(soff)} offen{o} {fl} lds".replace("  ", " "))

e("s_cmp_ge_u32 s2, 256")
e("s_cbranch_scc1 Lend")
for srd, off in ((SX,0),(SWQKV,8),(SWO,16),(SW1,32),(SB1,40),(SW2,48),(SB2,56),(SOUT,64),(SWS,80)):
    e(f"s_load_dwordx2 {sr(srd,2)}, s[0:1], {off}")
for srd, nb in ((SX,2097152),(SWQKV,1572864),(SWO,524288),(SW1,5636096),(SB1,2752),(SW2,5636096),(SB2,4096),(SOUT,2097152),(SWS,WS_BYTES)):
    e(f"s_mov_b32 {sr(srd+2)}, {nb}")
    e(f"s_mov_b32 {sr(srd+3)}, 0x20000")
e(f"v_and_b32 {vr(vLane)}, 63, v0")
e(f"v_lshrrev_b32 {vr(vTmp)}, 6, v0")
e(f"v_lshlrev_b32 {vr(vL16)}, 4, {vr(vLane)}")
e(f"v_readfirstlane_b32 {sr(sW)}, {vr(vTmp)}")
e(f"v_mov_b32 {vr(vZero)}, 0")
if PROF: e("v_mov_b32 v255, 0")
e(f"s_and_b32 {sr(sT0)}, s2, 7")
e(f"s_lshr_b32 {sr(sT1)}, s2, 3")
e(f"s_lshr_b32 {sr(sT2)}, {sr(sT0)}, 1")
e(f"s_and_b32 {sr(sT3)}, {sr(sT0)}, 1")
e(f"s_and_b32 {sr(sT4)}, {sr(sT1)}, 7")
e(f"s_lshr_b32 {sr(sT5)}, {sr(sT1)}, 3")
e(f"s_lshl_b32 {sr(sRb)}, {sr(sT2)}, 3")
e(f"s_add_u32 {sr(sRb)}, {sr(sRb)}, {sr(sT4)}")
e(f"s_lshl_b32 {sr(sCq)}, {sr(sT3)}, 2")
e(f"s_add_u32 {sr(sCq)}, {sr(sCq)}, {sr(sT5)}")
e(f"s_lshl_b32 {sr(sC)}, {sr(sT5)}, 1")
e(f"s_add_u32 {sr(sC)}, {sr(sC)}, {sr(sT4)}")
e(f"s_and_b32 {sr(sT4)}, {sr(sT1)}, 3")
e(f"s_lshl_b32 {sr(sFb)}, {sr(sT2)}, 2")
e(f"s_add_u32 {sr(sFb)}, {sr(sFb)}, {sr(sT4)}")
e(f"s_lshr_b32 {sr(sT4)}, {sr(sT1)}, 2")
e(f"s_lshl_b32 {sr(sDt)}, {sr(sT3)}, 3")
e(f"s_add_u32 {sr(sDt)}, {sr(sDt)}, {sr(sT4)}")
e(f"s_and_b32 {sr(sLo)}, {sr(sW)}, 1")
e(f"s_lshr_b32 {sr(sHi)}, {sr(sW)}, 1")

accQ, accK, accV = 16, 32, 48
csQ, csK, csV, rs = 64, 68, 72, 76
sq = 80
sel = 84
xf = [88, 92]
wf = [[96, 100, 104], [108, 112, 116]]
vXa = [120, 121, 122, 123]; vWa = 124
vXb = [128, 129, 130, 131]; vWb = 132
vDx = [125, 126]; vDw = 127
sRot = sC
e(f"v_lshrrev_b32 {vr(vTmp)}, 3, {vr(vLane)}")
e(f"v_and_b32 {vr(vTmp2)}, 7, {vr(vLane)}")
e(f"v_lshrrev_b32 {vr(vTmp3)}, 1, {vr(vTmp)}")
e(f"s_lshl_b32 {sr(sT0)}, {sr(sW)}, 4")
e(f"v_add_u32 {vr(vTmp)}, {sr(sT0)}, {vr(vTmp)}")
e(f"v_xor_b32 {vr(vDx[0])}, {vr(vTmp2)}, {vr(vTmp3)}")
e(f"v_xor_b32 {vr(vDx[1])}, 4, {vr(vDx[0])}")
e(f"v_lshlrev_b32 {vr(vDx[0])}, 4, {vr(vDx[0])}")
e(f"v_lshlrev_b32 {vr(vDx[1])}, 4, {vr(vDx[1])}")
e(f"v_lshl_add_u32 {vr(vDx[0])}, {vr(vTmp)}, 10, {vr(vDx[0])}")
e(f"v_lshl_add_u32 {vr(vDx[1])}, {vr(vTmp)}, 10, {vr(vDx[1])}")
e(f"v_add_u32 {vr(vDx[1])}, 8192, {vr(vDx[1])}")
e(f"v_and_b32 {vr(vTmp3)}, 1, {vr(vTmp3)}")
e(f"v_lshlrev_b32 {vr(vTmp3)}, 2, {vr(vTmp3)}")
e(f"v_xor_b32 {vr(vTmp3)}, {vr(vTmp3)}, {vr(vTmp2)}")
e(f"v_lshlrev_b32 {vr(vTmp3)}, 4, {vr(vTmp3)}")
vSw = 133
e(f"v_mov_b32 {vr(vSw)}, {vr(vTmp3)}")
e(f"v_mul_u32_u24 {vr(vDw)}, 3072, {vr(vTmp)}")
e(f"v_add_u32 {vr(vDw)}, {vr(vDw)}, {vr(vTmp3)}")
e("s_waitcnt lgkmcnt(0)")
e(f"s_load_dword {sr(sEp)}, {sr(SWS,2)}, 0")
stamp(0)
sWl = sT7
e(f"s_lshl_b32 {sr(sWl)}, {sr(sW)}, 11")
sXo, sWo = sT5, sT6
e(f"s_lshl_b32 {sr(sXo)}, {sr(sRb)}, 16")
e(f"s_lshl_b32 {sr(sWo)}, {sr(sCq)}, 7")
def p1_issue():
    e(f"s_add_u32 {sr(sT0)}, {sr(sT3)}, {sr(sRot)}")
    e(f"s_and_b32 {sr(sT0)}, {sr(sT0)}, 7")
    e(f"s_lshl_b32 {sr(sT1)}, {sr(sT0)}, 7")
    e(f"s_add_u32 {sr(sT1)}, {sr(sT1)}, {sr(sXo)}")
    e(f"s_mul_i32 {sr(sT2)}, {sr(sT0)}, {64*3072}")
    e(f"s_add_u32 {sr(sT2)}, {sr(sT2)}, {sr(sWo)}")
    e(f"s_and_b32 {sr(sT4)}, {sr(sT3)}, 3")
    e(f"s_lshl_b32 {sr(sT4)}, {sr(sT4)}, 15")
    e(f"s_add_u32 {sr(sT4)}, {sr(sT4)}, {sr(sWl)}")
    dma(vDx[0], SX, sT1, sT4, 0)
    dma(vDx[1], SX, sT1, sT4, 1024)
    for sec in range(3): dma(vDw, SWQKV, sT2, sT4, 8192 + sec*8192, off=sec*1024)
    e(f"s_add_u32 {sr(sT2)}, {sr(sT2)}, {8*3072}")
    for sec in range(3): dma(vDw, SWQKV, sT2, sT4, 8192 + sec*8192 + 1024, off=sec*1024)
for c in range(3):
    e(f"s_mov_b32 {sr(sT3)}, {c}")
    p1_issue()
e(f"v_and_b32 {vr(vTmp)}, 31, {vr(vLane)}")
e(f"v_lshrrev_b32 {vr(vTmp2)}, 5, {vr(vLane)}")
e(f"v_bfe_u32 {vr(vTmp3)}, {vr(vLane)}, 1, 3")
e(f"v_xor_b32 {vr(vTmp3)}, {vr(vTmp3)}, {vr(vTmp2)}")
e(f"v_lshlrev_b32 {vr(vTmp3)}, 4, {vr(vTmp3)}")
e(f"v_lshl_add_u32 {vr(vXb[0])}, {vr(vTmp)}, 7, {vr(vTmp3)}")
e(f"s_lshl_b32 {sr(sT0)}, {sr(sLo)}, 12")
e(f"v_add_u32 {vr(vXb[0])}, {sr(sT0)}, {vr(vXb[0])}")
for t in range(1, 4): e(f"v_xor_b32 {vr(vXb[t])}, {32*t}, {vr(vXb[0])}")
vTrA = 134
e(f"v_bfe_u32 {vr(vTmp)}, {vr(vLane)}, 2, 2")
e(f"v_lshlrev_b32 {vr(vTrA)}, 7, {vr(vTmp)}")
e(f"v_lshrrev_b32 {vr(vTmp)}, 1, {vr(vTmp)}")
e(f"v_lshl_add_u32 {vr(vTrA)}, {vr(vTmp)}, 6, {vr(vTrA)}")
e(f"v_bfe_u32 {vr(vTmp)}, {vr(vLane)}, 4, 1")
e(f"v_lshl_add_u32 {vr(vTrA)}, {vr(vTmp)}, 5, {vr(vTrA)}")
e(f"v_and_b32 {vr(vTmp)}, 3, {vr(vLane)}")
e(f"v_lshl_add_u32 {vr(vTrA)}, {vr(vTmp)}, 3, {vr(vTrA)}")
e(f"v_lshl_add_u32 {vr(vWb)}, {vr(vTmp2)}, 10, {vr(vTrA)}")
e(f"s_lshl_b32 {sr(sT0)}, {sr(sHi)}, 6")
e(f"v_xor_b32 {vr(vWb)}, {sr(sT0)}, {vr(vWb)}")
e(f"v_add_u32 {vr(vWb)}, 8192, {vr(vWb)}")
e(f"v_lshrrev_b32 {vr(vTmp)}, 2, {vr(vLane)}")
e(f"v_xor_b32 {vr(vTmp)}, {vr(vTmp)}, {vr(vLane)}")
e(f"v_and_b32 {vr(vTmp)}, 4, {vr(vTmp)}")
e(f"v_cmp_eq_u32 vcc, 0, {vr(vTmp)}")
e(f"v_mov_b32 {vr(vTmp)}, 0x3f803f80")
e(f"v_cndmask_b32 {vr(sel)}, 0, {vr(vTmp)}, vcc")
for i in range(1, 4): e(f"v_mov_b32 {vr(sel+i)}, {vr(sel)}")
for i in range(16, 84): e(f"v_mov_b32 {vr(i)}, 0")
e("s_waitcnt lgkmcnt(0)")
e(f"s_mul_i32 {sr(sEp)}, {sr(sEp)}, 1664525")
e(f"s_add_u32 {sr(sEp)}, {sr(sEp)}, 1013904223")
e(f"v_mov_b32 {vr(vEp)}, {sr(sEp)}")
sI = 62
e(f"s_mov_b32 {sr(sI)}, 0")
lab("Lp1")
e(f"s_cmp_lt_u32 {sr(sI)}, 6")
e("s_cbranch_scc1 Lp1w16")
e(f"s_cmp_eq_u32 {sr(sI)}, 6")
e("s_cbranch_scc1 Lp1w8")
e("s_waitcnt vmcnt(0)")
lab("Lp1w8")
e("s_waitcnt vmcnt(8)")
lab("Lp1w16")
e("s_waitcnt vmcnt(16)")
e("s_barrier")
e(f"s_and_b32 {sr(sSlot)}, {sr(sI)}, 3")
e(f"s_lshl_b32 {sr(sSlot)}, {sr(sSlot)}, 15")
for t in range(4): e(f"v_add_u32 {vr(vXa[t])}, {sr(sSlot)}, {vr(vXb[t])}")
e(f"v_add_u32 {vr(vWa)}, {sr(sSlot)}, {vr(vWb)}")
def p1_reads(t):
    b = t & 1
    e(f"ds_read_b128 {vr(xf[b],4)}, {vr(vXa[t])}")
    for sec in range(3):
        for r in range(2):
            e(f"ds_read_b64_tr_b16 {vr(wf[b][sec]+2*r,2)}, {vr(vWa)} offset:{sec*8192 + t*2048 + r*512}")
p1_reads(0)
e(f"s_cmp_ge_u32 {sr(sI)}, 5")
e("s_cbranch_scc1 Lp1nd")
e(f"s_add_u32 {sr(sT3)}, {sr(sI)}, 3")
p1_issue()
lab("Lp1nd")
for t in range(4):
    b = t & 1
    if t < 3:
        p1_reads(t + 1)
        e("s_waitcnt lgkmcnt(7)")
    else:
        e("s_waitcnt lgkmcnt(0)")
    X = vr(xf[b], 4)
    mfma32(vr(accQ,16), vr(wf[b][0],4), X, vr(accQ,16))
    mfma16(vr(rs,4), vr(sel,4), X, vr(rs,4))
    mfma32(vr(accK,16), vr(wf[b][1],4), X, vr(accK,16))
    mfma16(vr(csQ,4), vr(sel,4), vr(wf[b][0],4), vr(csQ,4))
    mfma32(vr(accV,16), X, vr(wf[b][2],4), vr(accV,16))
    mfma16(vr(csK,4), vr(sel,4), vr(wf[b][1],4), vr(csK,4))
    for i in range(4): e(f"v_dot2_f32_bf16 {vr(sq+i)}, {vr(xf[b]+i)}, {vr(xf[b]+i)}, {vr(sq+i)}")
    mfma16(vr(csV,4), vr(sel,4), vr(wf[b][2],4), vr(csV,4))
e(f"s_add_u32 {sr(sI)}, {sr(sI)}, 1")
e(f"s_cmp_lt_u32 {sr(sI)}, 8")
e("s_cbranch_scc1 Lp1")
stamp(1)
e(f"v_add_f32 {vr(sq)}, {vr(sq)}, {vr(sq+1)}")
e(f"v_add_f32 {vr(sq+2)}, {vr(sq+2)}, {vr(sq+3)}")
e(f"v_add_f32 {vr(sq)}, {vr(sq)}, {vr(sq+2)}")
halfsum(sq, sq+1)
vM, vR = 88, 89
e(f"v_mul_f32 {vr(vM)}, {f32(-1.0/512)}, {vr(rs)}")
e(f"v_mul_f32 {vr(sq)}, {f32(1.0/512)}, {vr(sq)}")
e(f"v_fma_f32 {vr(sq)}, -{vr(vM)}, {vr(vM)}, {vr(sq)}")
e(f"v_max_f32 {vr(sq)}, 0, {vr(sq)}")
e(f"v_add_f32 {vr(sq)}, {f32(1e-5)}, {vr(sq)}")
e(f"v_rsq_f32 {vr(vR)}, {vr(sq)}")
e(f"v_cmp_gt_u32 vcc, 32, {vr(vLane)}")
def hilo(src, hi, lo):
    e(f"v_cvt_pk_bf16_f32 {vr(hi)}, {vr(src)}, {vr(src)}")
    e(f"v_and_b32 {vr(lo)}, 0xffff0000, {vr(hi)}")
    e(f"v_sub_f32 {vr(lo)}, {vr(src)}, {vr(lo)}")
    e(f"v_cvt_pk_bf16_f32 {vr(lo)}, {vr(lo)}, {vr(lo)}")
xa, ra, one2 = 92, 96, 100
wa = [104, 108, 112]
e(f"s_mov_b32 {sr(sT0)}, 0xffff")
hilo(vM, vTmp, vTmp2)
e(f"v_cndmask_b32 {vr(xa)}, 0, {vr(vTmp)}, vcc")
e(f"v_and_b32 {vr(vTmp2)}, 0xffff, {vr(vTmp2)}")
e(f"v_cndmask_b32 {vr(xa+1)}, 0, {vr(vTmp2)}, vcc")
e(f"v_mov_b32 {vr(xa+2)}, 0"); e(f"v_mov_b32 {vr(xa+3)}, 0")
for i, cs in enumerate((csQ, csK, csV)):
    hilo(cs, wa[i]+1, vTmp2)
    e(f"v_bfi_b32 {vr(wa[i])}, {sr(sT0)}, {vr(wa[i]+1)}, {vr(vTmp2)}")
    e(f"v_mov_b32 {vr(wa[i]+2)}, 0"); e(f"v_mov_b32 {vr(wa[i]+3)}, 0")
hilo(vR, vTmp, vTmp2)
e(f"v_bfi_b32 {vr(vTmp)}, {sr(sT0)}, {vr(vTmp)}, {vr(vTmp2)}")
e(f"v_cndmask_b32 {vr(ra)}, 0, {vr(vTmp)}, vcc")
for i in range(1, 4): e(f"v_mov_b32 {vr(ra+i)}, 0")
for i in range(4): e(f"v_mov_b32 {vr(one2+i)}, 0x3f803f80")
Rb = 64
mfma32(vr(accK,16), vr(wa[1],4), vr(xa,4), vr(accK,16))
mfma32(vr(accV,16), vr(xa,4), vr(wa[2],4), vr(accV,16))
mfma32(vr(Rb,16), vr(ra,4), vr(one2,4), "0")
mfma32(vr(accQ,16), vr(wa[0],4), vr(xa,4), vr(accQ,16))
Kp, Vp, Qf = 136, 144, 8
for i in range(16): e(f"v_mul_f32 {vr(accK+i)}, {vr(vR)}, {vr(accK+i)}")
for i in range(8): e(f"v_cvt_pk_bf16_f32 {vr(Kp+i)}, {vr(accK+2*i)}, {vr(accK+2*i+1)}")
for i in range(16): e(f"v_mul_f32 {vr(accV+i)}, {vr(Rb+i)}, {vr(accV+i)}")
for i in range(8): e(f"v_cvt_pk_bf16_f32 {vr(Vp+i)}, {vr(accV+2*i)}, {vr(accV+2*i+1)}")
sTile, sRec = 62, 63
e(f"s_lshl_b32 {sr(sTile)}, {sr(sRb)}, 1")
e(f"s_add_u32 {sr(sTile)}, {sr(sTile)}, {sr(sLo)}")
e(f"s_lshl_b32 {sr(sRec)}, {sr(sTile)}, 3")
e(f"s_add_u32 {sr(sRec)}, {sr(sRec)}, {sr(sCq)}")
e(f"s_lshl_b32 {sr(sRec)}, {sr(sRec)}, 1")
e(f"s_add_u32 {sr(sRec)}, {sr(sRec)}, {sr(sHi)}")
e(f"s_lshl_b32 {sr(sT0)}, {sr(sRec)}, 12")
e(f"s_add_u32 {sr(sT0)}, {sr(sT0)}, {KV}")
for i in range(4):
    e(f"buffer_store_dwordx4 {vr(Kp+4*i,4)}, {vr(vL16)}, {sr(SWS,4)}, {sr(sT0)} offen offset:{1024*i} sc1")
REC = 4128
KOFF = [0, 1024]; VOFF = [2048, 3088]
e(f"s_lshl_b32 {sr(sT1)}, {sr(sLo)}, 1")
e(f"s_add_u32 {sr(sT1)}, {sr(sT1)}, {sr(sHi)}")
e(f"s_mul_i32 {sr(sT1)}, {sr(sT1)}, {REC}")
e(f"s_add_u32 {sr(sT1)}, {sr(sT1)}, {16*REC}")
e(f"v_add_u32 {vr(vTmp)}, {sr(sT1)}, {vr(vL16)}")
for i, o in enumerate(KOFF + VOFF):
    e(f"ds_write_b128 {vr(vTmp)}, {vr(Kp+4*i,4)} offset:{o}")
e(f"v_lshrrev_b32 {vr(vTmp2)}, 1, {vr(vLane)}")
e(f"v_mul_u32_u24 {vr(vTmp2)}, {REC}, {vr(vTmp2)}")
e(f"v_and_b32 {vr(vTmp3)}, 1, {vr(vLane)}")
e(f"v_mul_u32_u24 {vr(vTmp3)}, 1040, {vr(vTmp3)}")
e(f"v_add_u32 {vr(vTmp2)}, {vr(vTmp2)}, {vr(vTmp3)}")
e("s_mov_b32 exec_hi, 0xff")
e(f"ds_write_b128 {vr(vTmp2)}, {vr(one2,4)} offset:3072")
e("s_mov_b64 exec, -1")
e(f"v_mul_f32 {vr(vR)}, {f32(0.25*1.4426950408889634)}, {vr(vR)}")
for i in range(16): e(f"v_mul_f32 {vr(accQ+i)}, {vr(vR)}, {vr(accQ+i)}")
for i in range(8): e(f"v_cvt_pk_bf16_f32 {vr(Qf+i)}, {vr(accQ+2*i)}, {vr(accQ+2*i+1)}")
e(f"s_lshl_b32 {sr(sT0)}, {sr(sRec)}, 7")
e(f"s_add_u32 {sr(sT0)}, {sr(sT0)}, {F_KV}")
publish(sT0)
stamp(2)

W1S = 131072
e(f"s_cmp_eq_u32 {sr(sFb)}, 15")
e("s_cbranch_scc1 Lw1skip")
e(f"v_lshrrev_b32 {vr(vTmp)}, 2, {vr(vLane)}")
e(f"v_mul_u32_u24 {vr(vTmp)}, 2752, {vr(vTmp)}")
e(f"v_and_b32 {vr(vTmp2)}, 3, {vr(vLane)}")
e(f"v_lshl_add_u32 {vr(vTmp2)}, {vr(vTmp2)}, 4, {vr(vTmp)}")
e(f"s_lshl_b32 {sr(sT0)}, {sr(sDt)}, 2")
e(f"s_add_u32 {sr(sT0)}, {sr(sT0)}, {sr(sW)}")
e(f"s_mul_i32 {sr(sT1)}, {sr(sT0)}, {32*2752}")
e(f"s_mul_i32 {sr(sT2)}, {sr(sFb)}, 192")
e(f"s_add_u32 {sr(sT1)}, {sr(sT1)}, {sr(sT2)}")
e(f"s_mul_i32 {sr(sT3)}, {sr(sW)}, 6144")
e(f"s_add_u32 {sr(sT3)}, {sr(sT3)}, {W1S}")
for blk in range(3): dma(vTmp2, SW1, sT1, sT3, blk*1024, off=blk*64)
e(f"s_add_u32 {sr(sT1)}, {sr(sT1)}, {16*2752}")
for blk in range(3): dma(vTmp2, SW1, sT1, sT3, 3072 + blk*1024, off=blk*64)
e(f"v_bfe_u32 {vr(vTmp)}, {vr(vLane)}, 2, 2")
e(f"v_lshlrev_b32 {vr(vTmp3)}, 6, {vr(vTmp)}")
e(f"v_and_b32 {vr(vTmp)}, 63, {vr(vTrA)}")
e(f"v_add_u32 {vr(vTmp3)}, {vr(vTmp3)}, {vr(vTmp)}")
e(f"v_lshrrev_b32 {vr(vTmp)}, 5, {vr(vLane)}")
e(f"v_lshl_add_u32 {vr(vTmp3)}, {vr(vTmp)}, 9, {vr(vTmp3)}")
vTrB = 135
e(f"v_mov_b32 {vr(vTrB)}, {vr(vTmp3)}")
e(f"v_add_u32 {vr(vTmp3)}, {sr(sT3)}, {vr(vTmp3)}")
e("s_waitcnt vmcnt(0)")
for i in range(6):
    for r in range(2):
        e(f"ds_read_b64_tr_b16 {vr(16+4*i+2*r,2)}, {vr(vTmp3)} offset:{i*1024 + r*256}")
e(f"s_mul_i32 {sr(sT1)}, {sr(sFb)}, {128*3072}")
e(f"s_mul_i32 {sr(sT2)}, {sr(sT0)}, 6144")
e(f"s_add_u32 {sr(sT1)}, {sr(sT1)}, {sr(sT2)}")
e(f"s_add_u32 {sr(sT1)}, {sr(sT1)}, {W1P}")
e(f"s_add_u32 {sr(sT2)}, {sr(sT1)}, 3072")
e("s_waitcnt lgkmcnt(0)")
for i in range(6):
    e(f"buffer_store_dwordx4 {vr(16+4*i,4)}, {vr(vL16)}, {sr(SWS,4)}, {sr(sT1 if i < 3 else sT2)} offen offset:{(i%3)*1024} sc1")
e(f"s_lshl_b32 {sr(sT1)}, {sr(sFb)}, 6")
e(f"s_add_u32 {sr(sT1)}, {sr(sT1)}, {sr(sT0)}")
e(f"s_lshl_b32 {sr(sT1)}, {sr(sT1)}, 7")
e(f"s_add_u32 {sr(sT1)}, {sr(sT1)}, {F_W1}")
publish(sT1)
lab("Lw1skip")
e(f"v_bfe_u32 {vr(vTmp)}, {vr(vLane)}, 2, 2")
e(f"v_lshlrev_b32 {vr(vTmp3)}, 6, {vr(vTmp)}")
e(f"v_and_b32 {vr(vTmp)}, 63, {vr(vTrA)}")
e(f"v_add_u32 {vr(vTmp3)}, {vr(vTmp3)}, {vr(vTmp)}")
e(f"v_lshrrev_b32 {vr(vTmp)}, 5, {vr(vLane)}")
e(f"v_lshl_add_u32 {vr(vTrB)}, {vr(vTmp)}, 9, {vr(vTmp3)}")
aSw, aTrA, aTrB = 0, 1, 2
e(f"v_accvgpr_write_b32 {ar(aSw)}, {vr(vSw)}")
e(f"v_accvgpr_write_b32 {ar(aTrA)}, {vr(vTrA)}")
e(f"v_accvgpr_write_b32 {ar(aTrB)}, {vr(vTrB)}")

e(f"s_add_u32 {sr(sT0)}, {sr(sRb)}, {sr(sW)}")
e(f"s_cmp_lt_u32 {sr(sT0)}, 4")
e("s_cbranch_scc1 Lnohalo")
e(f"s_sub_u32 {sr(sT0)}, {sr(sT0)}, 4")
e(f"s_lshl_b32 {sr(sT0)}, {sr(sT0)}, 4")
e(f"s_add_u32 {sr(sT0)}, {sr(sT0)}, {sr(sCq)}")
e(f"s_lshl_b32 {sr(sT0)}, {sr(sT0)}, 1")
e(f"s_lshl_b32 {sr(sT1)}, {sr(sT0)}, 7")
e(f"s_add_u32 {sr(sT1)}, {sr(sT1)}, {F_KV}")
e(f"v_and_b32 {vr(vTmp2)}, 1, {vr(vLane)}")
e(f"v_bfe_u32 {vr(vTmp3)}, {vr(vLane)}, 1, 1")
e(f"v_lshl_add_u32 {vr(vTmp2)}, {vr(vTmp3)}, 4, {vr(vTmp2)}")
e(f"v_lshlrev_b32 {vr(vTmp2)}, 7, {vr(vTmp2)}")
poll(vTmp2, sT1)
e(f"s_lshl_b32 {sr(sT0)}, {sr(sT0)}, 12")
e(f"s_add_u32 {sr(sT0)}, {sr(sT0)}, {KV}")
e(f"s_mul_i32 {sr(sT2)}, {sr(sW)}, {4*REC}")
for tl in range(2):
    for hp in range(2):
        for i, o in enumerate(KOFF + VOFF):
            dma(vL16, SWS, sT0, sT2, (tl*2+hp)*REC + o, off=i*1024, fl="sc1")
        e(f"s_add_u32 {sr(sT0)}, {sr(sT0)}, {4096 if hp == 0 else 65536-4096}")
lab("Lnohalo")
S = [16, 32]; NM = [48, 64]; OA = [80, 96]; EE = [112, 128]
Kf = [144, 148]; Vf = [[152, 156], [160, 164]]; P = [168, 176]; PF = [184, 192]; MK = 200
vKa, vVa, mx = 208, [209, 210], [211, 212]
Kx = [216, 220]; Vx = [[224, 228], [232, 236]]
e(f"v_and_b32 {vr(vTmp)}, 31, {vr(vLane)}")
e(f"v_lshrrev_b32 {vr(vTmp2)}, 5, {vr(vLane)}")
e(f"v_lshlrev_b32 {vr(vTmp2)}, 2, {vr(vTmp2)}")
e(f"v_sub_u32 {vr(vTmp)}, {vr(vTmp)}, {vr(vTmp2)}")
for r in range(16):
    e(f"v_cmp_le_i32 {sr(sMask+2*r,2)}, {8*(r>>2)+(r&3)}, {vr(vTmp)}")
e(f"v_mov_b32 {vr(vTmp2)}, 0xffff")
e(f"v_mov_b32 {vr(vTmp3)}, 0xffff0000")
for j in range(8):
    e(f"v_cndmask_b32 {vr(MK+j)}, 0, {vr(vTmp2)}, {sr(sMask+4*j,2)}")
    e(f"v_cndmask_b32 {vr(vTmp)}, 0, {vr(vTmp3)}, {sr(sMask+4*j+2,2)}")
    e(f"v_or_b32 {vr(MK+j)}, {vr(MK+j)}, {vr(vTmp)}")
TS = 2*REC
e(f"s_lshl_b32 {sr(sT1)}, {sr(sLo)}, 1")
e(f"s_add_u32 {sr(sT1)}, {sr(sT1)}, {sr(sHi)}")
e(f"s_mul_i32 {sr(sT1)}, {sr(sT1)}, {REC}")
e(f"v_add_u32 {vr(vKa)}, {sr(sT1)}, {vr(vL16)}")
e(f"v_and_b32 {vr(vTmp)}, 16, {vr(vLane)}")
e(f"v_cmp_eq_u32 vcc, 0, {vr(vTmp)}")
e(f"s_add_u32 {sr(sT1)}, {sr(sT1)}, 1024")
e(f"v_mov_b32 {vr(vTmp)}, {sr(sT1)}")
e(f"v_cndmask_b32 {vr(vVa[0])}, {vr(vTmp)}, {vr(vKa)}, vcc")
e(f"v_cndmask_b32 {vr(vVa[1])}, {vr(vKa)}, {vr(vTmp)}, vcc")
sN, sOff = sT6, sT7
e(f"s_min_u32 {sr(sN)}, {sr(sTile)}, 7")
e(f"s_sub_u32 {sr(sOff)}, 8, {sr(sN)}")
e(f"s_mul_i32 {sr(sOff)}, {sr(sOff)}, {TS}")
e("s_waitcnt vmcnt(0) lgkmcnt(0)")
e("s_barrier")
stamp(3)
WOL = 98304
e(f"v_lshrrev_b32 {vr(vTmp)}, 3, {vr(vLane)}")
e(f"v_lshl_add_u32 {vr(vTmp)}, {vr(vTmp)}, 10, {vr(vSw)}")
e(f"s_lshl_b32 {sr(sT0)}, {sr(sW)}, 17")
e(f"s_lshl_b32 {sr(sT1)}, {sr(sCq)}, 7")
e(f"s_add_u32 {sr(sT0)}, {sr(sT0)}, {sr(sT1)}")
e(f"s_lshl_b32 {sr(sT1)}, {sr(sW)}, 14")
for i in range(16):
    dma(vTmp, SWO, sT0, sT1, WOL + i*1024)
    if i < 15: e(f"s_add_u32 {sr(sT0)}, {sr(sT0)}, 8192")
aXr = 4
e(f"v_and_b32 {vr(vTmp)}, 31, {vr(vLane)}")
e(f"v_lshrrev_b32 {vr(vTmp2)}, 5, {vr(vLane)}")
e(f"v_lshlrev_b32 {vr(vTmp2)}, 3, {vr(vTmp2)}")
e(f"v_lshl_add_u32 {vr(vTmp)}, {vr(vTmp)}, 10, {vr(vTmp2)}")
aRow = 3
e(f"v_accvgpr_write_b32 {ar(aRow)}, {vr(vTmp)}")
e(f"s_lshl_b32 {sr(sT0)}, {sr(sTile)}, 15")
e(f"s_lshl_b32 {sr(sT1)}, {sr(sCq)}, 7")
e(f"s_add_u32 {sr(sT0)}, {sr(sT0)}, {sr(sT1)}")
e(f"s_lshl_b32 {sr(sT1)}, {sr(sHi)}, 6")
sXO = 61
e(f"s_add_u32 {sr(sXO)}, {sr(sT0)}, {sr(sT1)}")
for g in range(4):
    e(f"buffer_load_dwordx2 {ar(aXr+2*g,2)}, {vr(vTmp)}, {sr(SX,4)}, {sr(sXO)} offen offset:{16*g}")
vKd = vTmp2
e(f"v_add_u32 {vr(vKd)}, {8*TS}, {vr(vKa)}")
for hd in range(2): e(f"ds_read_b128 {vr(Kf[hd],4)}, {vr(vKd)} offset:{KOFF[hd]}")
for hd in range(2): e(f"ds_read_b128 {vr(Kx[hd],4)}, {vr(vKa)} offset:{KOFF[hd]}")
e("s_waitcnt lgkmcnt(2)")
for hd in range(2): mfma32(vr(S[hd],16), vr(Kf[hd],4), vr(Qf+4*hd,4), "0")
e(f"s_cmp_lt_u32 {sr(sRb)}, 4")
e("s_cbranch_scc1 Lnofirst")
e("s_waitcnt lgkmcnt(0)")
for hd in range(2): mfma32(vr(EE[hd],16), vr(Kx[hd],4), vr(Qf+4*hd,4), "0")
e("s_branch Lfirstdone")
lab("Lnofirst")
for hd in range(2):
    for i in range(16): e(f"v_mov_b32 {vr(EE[hd]+i)}, 0xff800000")
lab("Lfirstdone")
vKl = 213
e(f"v_add_u32 {vr(vKl)}, {sr(sOff)}, {vr(vKa)}")
e("s_waitcnt lgkmcnt(0)")
for hd in range(2): e(f"ds_read_b128 {vr(Kf[hd],4)}, {vr(vKl)} offset:{KOFF[hd]}")
for hd in range(2):
    for r in range(16): e(f"v_cndmask_b32 {vr(EE[hd]+r)}, {vr(EE[hd]+r)}, {vr(S[hd]+r)}, {sr(sMask+2*r,2)}")
def maxblk(m, src, first=False):
    if first:
        e(f"v_max3_f32 {vr(m)}, {vr(src)}, {vr(src+1)}, {vr(src+2)}")
        for i in range(3, 15, 2): e(f"v_max3_f32 {vr(m)}, {vr(src+i)}, {vr(src+i+1)}, {vr(m)}")
        e(f"v_max_f32 {vr(m)}, {vr(src+15)}, {vr(m)}")
    else:
        for i in range(0, 16, 2): e(f"v_max3_f32 {vr(m)}, {vr(src+i)}, {vr(src+i+1)}, {vr(m)}")
e("s_waitcnt lgkmcnt(0)")
mfma32(vr(S[0],16), vr(Kf[0],4), vr(Qf,4), "0")
e(f"ds_read_b128 {vr(Kf[0],4)}, {vr(vKl)} offset:{TS+KOFF[0]}")
for hd in range(2): maxblk(mx[hd], EE[hd], True)
e(f"s_cmp_eq_u32 {sr(sN)}, 0")
e("s_cbranch_scc1 Lpass1done")
e(f"s_mov_b32 {sr(sT0)}, {sr(sN)}")
lab("Lpass1")
e("s_waitcnt lgkmcnt(1)")
mfma32(vr(S[1],16), vr(Kf[1],4), vr(Qf+4,4), "0")
e(f"ds_read_b128 {vr(Kf[1],4)}, {vr(vKl)} offset:{TS+KOFF[1]}")
maxblk(mx[0], S[0])
e("s_waitcnt lgkmcnt(1)")
mfma32(vr(S[0],16), vr(Kf[0],4), vr(Qf,4), "0")
e(f"ds_read_b128 {vr(Kf[0],4)}, {vr(vKl)} offset:{2*TS+KOFF[0]}")
e(f"v_add_u32 {vr(vKl)}, {TS}, {vr(vKl)}")
e(f"s_sub_u32 {sr(sT0)}, {sr(sT0)}, 1")
maxblk(mx[1], S[1])
e(f"s_cmp_lg_u32 {sr(sT0)}, 0")
e("s_cbranch_scc1 Lpass1")
lab("Lpass1done")
vVl = [214, 215]
e(f"v_add_u32 {vr(vKl)}, {sr(sOff)}, {vr(vKa)}")
e("s_waitcnt lgkmcnt(0)")
for hd in range(2): e(f"ds_read_b128 {vr(Kf[hd],4)}, {vr(vKl)} offset:{KOFF[hd]}")
for hd in range(2):
    e(f"v_add_u32 {vr(vVl[hd])}, {8*TS}, {vr(vVa[hd])}")
    for u in range(2): e(f"ds_read_b128 {vr(Vf[hd][u],4)}, {vr(vVl[hd])} offset:{VOFF[u]}")
    for u in range(2): e(f"ds_read_b128 {vr(Vx[hd][u],4)}, {vr(vVa[hd])} offset:{VOFF[u]}")
    e(f"v_add_u32 {vr(vVl[hd])}, {sr(sOff)}, {vr(vVa[hd])}")
for hd in range(2):
    halfsum(mx[hd], vTmp, "v_max_f32")
    for i in range(16): e(f"v_sub_f32 {vr(NM[hd]+i)}, 0, {vr(mx[hd])}")
e("s_waitcnt lgkmcnt(0)")
mfma32(vr(S[0],16), vr(Kf[0],4), vr(Qf,4), vr(NM[0],16))
e(f"ds_read_b128 {vr(Kf[0],4)}, {vr(vKl)} offset:{TS+KOFF[0]}")
for hd in range(2):
    for i in range(16): e(f"v_sub_f32 {vr(EE[hd]+i)}, {vr(EE[hd]+i)}, {vr(mx[hd])}")
    for i in range(16): e(f"v_exp_f32 {vr(EE[hd]+i)}, {vr(EE[hd]+i)}")
    for j in range(8): e(f"v_cvt_pk_bf16_f32 {vr(PF[hd]+j)}, {vr(EE[hd]+2*j)}, {vr(EE[hd]+2*j+1)}")
    for j in range(8): e(f"v_and_b32 {vr(P[hd]+j)}, {vr(PF[hd]+j)}, {vr(MK+j)}")
    for j in range(8): e(f"v_xor_b32 {vr(PF[hd]+j)}, {vr(PF[hd]+j)}, {vr(P[hd]+j)}")
mfma32(vr(OA[0],16), vr(Vf[0][0],4), vr(P[0],4), "0")
mfma32(vr(OA[0],16), vr(Vf[0][1],4), vr(P[0]+4,4), vr(OA[0],16))
for u in range(2): e(f"ds_read_b128 {vr(Vf[0][u],4)}, {vr(vVl[0])} offset:{VOFF[u]}")
e(f"s_cmp_lt_u32 {sr(sRb)}, 4")
e("s_cbranch_scc1 Lnofirst2")
mfma32(vr(OA[1],16), vr(Vx[1][0],4), vr(PF[1],4), "0")
mfma32(vr(OA[0],16), vr(Vx[0][0],4), vr(PF[0],4), vr(OA[0],16))
mfma32(vr(OA[1],16), vr(Vx[1][1],4), vr(PF[1]+4,4), vr(OA[1],16))
mfma32(vr(OA[0],16), vr(Vx[0][1],4), vr(PF[0]+4,4), vr(OA[0],16))
e("s_branch Lfirst2done")
lab("Lnofirst2")
for i in range(16): e(f"v_mov_b32 {vr(OA[1]+i)}, 0")
lab("Lfirst2done")
e(f"s_cmp_eq_u32 {sr(sN)}, 0")
e("s_cbranch_scc1 Lpass2done")
e(f"s_mov_b32 {sr(sT0)}, {sr(sN)}")
lab("Lpass2")
for hd in range(2):
    o = 1 - hd
    def ex(a, b):
        for i in range(a, b): e(f"v_exp_f32 {vr(S[hd]+i)}, {vr(S[hd]+i)}")
    e("s_waitcnt lgkmcnt(3)")
    mfma32(vr(S[o],16), vr(Kf[o],4), vr(Qf+4*o,4), vr(NM[o],16))
    e(f"ds_read_b128 {vr(Kf[o],4)}, {vr(vKl)} offset:{(TS if hd == 0 else 2*TS)+KOFF[o]}")
    ex(0, 4)
    mfma32(vr(OA[o],16), vr(Vf[o][0],4), vr(P[o],4), vr(OA[o],16))
    ex(4, 8)
    mfma32(vr(OA[o],16), vr(Vf[o][1],4), vr(P[o]+4,4), vr(OA[o],16))
    for u in range(2): e(f"ds_read_b128 {vr(Vf[o][u],4)}, {vr(vVl[o])} offset:{(0 if hd == 0 else TS)+VOFF[u]}")
    ex(8, 16)
    if hd == 1:
        e(f"v_add_u32 {vr(vKl)}, {TS}, {vr(vKl)}")
        for h2 in range(2): e(f"v_add_u32 {vr(vVl[h2])}, {TS}, {vr(vVl[h2])}")
        e(f"s_sub_u32 {sr(sT0)}, {sr(sT0)}, 1")
    for j in range(8): e(f"v_cvt_pk_bf16_f32 {vr(P[hd]+j)}, {vr(S[hd]+2*j)}, {vr(S[hd]+2*j+1)}")
e(f"s_cmp_lg_u32 {sr(sT0)}, 0")
e("s_cbranch_scc1 Lpass2")
lab("Lpass2done")
e("s_waitcnt lgkmcnt(0)")
mfma32(vr(OA[1],16), vr(Vf[1][0],4), vr(P[1],4), vr(OA[1],16))
mfma32(vr(OA[1],16), vr(Vf[1][1],4), vr(P[1]+4,4), vr(OA[1],16))
e(f"s_lshl_b32 {sr(sT0)}, {sr(sRec)}, 11")
e(f"s_add_u32 {sr(sT0)}, {sr(sT0)}, {OB}")
for hd in range(2):
    val = OA[hd] + 8*hd; sm = OA[hd] + 8*(1-hd)
    e(f"v_rcp_f32 {vr(vTmp)}, {vr(sm)}")
    for i in range(8): e(f"v_mul_f32 {vr(val+i)}, {vr(vTmp)}, {vr(val+i)}")
    for j in range(4): e(f"v_cvt_pk_bf16_f32 {vr(P[hd]+j)}, {vr(val+2*j)}, {vr(val+2*j+1)}")
    e(f"buffer_store_dwordx4 {vr(P[hd],4)}, {vr(vL16)}, {sr(SWS,4)}, {sr(sT0)} offen offset:{1024*hd} sc1")
e(f"s_lshl_b32 {sr(sT0)}, {sr(sRec)}, 7")
e(f"s_add_u32 {sr(sT0)}, {sr(sT0)}, {F_O}")
publish(sT0)
stamp(4)
e("s_barrier")
vSw, vTrA, vTrB, vRow = 8, 9, 10, 11
e(f"v_accvgpr_read_b32 {vr(vSw)}, {ar(aSw)}")
e(f"v_accvgpr_read_b32 {vr(vTrA)}, {ar(aTrA)}")
e(f"v_accvgpr_read_b32 {vr(vTrB)}, {ar(aTrB)}")
e(f"v_accvgpr_read_b32 {vr(vRow)}, {ar(aRow)}")
def w2addr(kh, j):
    if j < 20: return (kh*20 + j) * 2048
    if j < 27: return 135168 + (kh*7 + j-20) * 2048
    if j < 40: return 81920 + (kh*13 + j-27) * 2048
    return (kh*20 + j-40) * 2048
vDw2 = 12
e(f"v_lshrrev_b32 {vr(vTmp)}, 3, {vr(vLane)}")
e(f"v_lshl_add_u32 {vr(vDw2)}, {vr(vTmp)}, 12, {vr(vSw)}")
sW2 = 98
e(f"s_mul_i32 {sr(sW2)}, {sr(sHi)}, {43*16*4096}")
e(f"s_lshl_b32 {sr(sT0)}, {sr(sLo)}, 15")
e(f"s_add_u32 {sr(sW2)}, {sr(sW2)}, {sr(sT0)}")
e(f"s_lshl_b32 {sr(sT0)}, {sr(sRb)}, 7")
e(f"s_add_u32 {sr(sW2)}, {sr(sW2)}, {sr(sT0)}")
def w2_issue(j0, j1):
    stride = w2addr(1, j0) - w2addr(0, j0)
    e(f"s_mul_i32 {sr(sT1)}, {sr(sHi)}, {stride}")
    e(f"s_lshl_b32 {sr(sT0)}, {sr(sLo)}, 10")
    e(f"s_add_u32 {sr(sT1)}, {sr(sT1)}, {sr(sT0)}")
    for j in range(j0, j1):
        e(f"s_add_u32 {sr(sT0)}, {sr(sW2)}, {j*65536}")
        dma(vDw2, SW2, sT0, sT1, w2addr(0, j))
    return j1 - j0
w2_issue(0, 20)

e(f"s_lshl_b32 {sr(sT0)}, {sr(sTile)}, 1")
e(f"s_add_u32 {sr(sT0)}, {sr(sT0)}, {sr(sHi)}")
e(f"s_lshl_b32 {sr(sT1)}, {sr(sT0)}, 10")
e(f"s_add_u32 {sr(sT1)}, {sr(sT1)}, {F_O}")
e(f"v_and_b32 {vr(vTmp2)}, 7, {vr(vLane)}")
e(f"v_lshlrev_b32 {vr(vTmp2)}, 7, {vr(vTmp2)}")
poll(vTmp2, sT1)
stamp(5)
e(f"s_lshl_b32 {sr(sT0)}, {sr(sT0)}, 14")
e(f"s_add_u32 {sr(sT0)}, {sr(sT0)}, {OB}")
Of = 64
for i in range(16):
    e(f"buffer_load_dwordx4 {vr(Of+4*i,4)}, {vr(vL16)}, {sr(SWS,4)}, {sr(sT0)} offen offset:{(i&3)*1024} sc1")
    if i & 3 == 3 and i < 15: e(f"s_add_u32 {sr(sT0)}, {sr(sT0)}, 4096")
vTa = [13, 14]
e(f"v_lshrrev_b32 {vr(vTmp)}, 5, {vr(vLane)}")
vTrP = 15
e(f"v_lshl_add_u32 {vr(vTrP)}, {vr(vTmp)}, 9, {vr(vTrA)}")
e(f"s_lshl_b32 {sr(sT1)}, {sr(sHi)}, 15")
e(f"s_add_u32 {sr(sT1)}, {sr(sT1)}, {WOL}")
e(f"s_lshl_b32 {sr(sT2)}, {sr(sHi)}, 6")
e(f"v_xor_b32 {vr(vTa[0])}, {sr(sT2)}, {vr(vTrP)}")
e(f"v_add_u32 {vr(vTa[0])}, {sr(sT1)}, {vr(vTa[0])}")
e(f"v_xor_b32 {vr(vTa[1])}, 64, {vr(vTa[0])}")
H, HO = 16, 32
wb = [[128, 132], [136, 140]]
def p3_reads(t):
    for dh in range(2):
        for r in range(2):
            e(f"ds_read_b64_tr_b16 {vr(wb[t&1][dh]+2*r,2)}, {vr(vTa[dh])} offset:{t*2048 + r*1024}")
p3_reads(0)
for t in range(16):
    if t < 15: p3_reads(t+1)
    e(f"s_waitcnt vmcnt({15-t}) lgkmcnt({4 if t < 15 else 0})")
    mfma32(vr(HO,16), vr(wb[t&1][1],4), vr(Of+4*t,4), "0" if t == 0 else vr(HO,16))
    mfma32(vr(H,16), vr(wb[t&1][0],4), vr(Of+4*t,4), "0" if t == 0 else vr(H,16))
XCH = 81920
def exchange(partner_xor, send, recv):
    e(f"s_xor_b32 {sr(sT0)}, {sr(sW)}, {partner_xor}")
    e(f"s_lshl_b32 {sr(sT0)}, {sr(sT0)}, 12")
    e(f"s_add_u32 {sr(sT0)}, {sr(sT0)}, {XCH}")
    e(f"v_add_u32 {vr(vTmp)}, {sr(sT0)}, {vr(vL16)}")
    e(f"s_lshl_b32 {sr(sT1)}, {sr(sW)}, 12")
    e(f"s_add_u32 {sr(sT1)}, {sr(sT1)}, {XCH}")
    e(f"v_add_u32 {vr(vTmp2)}, {sr(sT1)}, {vr(vL16)}")
    for g in range(4): e(f"ds_write_b128 {vr(vTmp)}, {vr(send+4*g,4)} offset:{1024*g}")
    e("s_waitcnt lgkmcnt(0)")
    e("s_barrier")
    for g in range(4): e(f"ds_read_b128 {vr(recv+4*g,4)}, {vr(vTmp2)} offset:{1024*g}")
exchange(2, HO, 48)
for g in range(4):
    for k in range(2):
        e(f"v_accvgpr_read_b32 {vr(vTmp3)}, {ar(aXr+2*g+k)}")
        e(f"v_lshlrev_b32 {vr(64)}, 16, {vr(vTmp3)}")
        e(f"v_and_b32 {vr(65)}, 0xffff0000, {vr(vTmp3)}")
        e(f"v_add_f32 {vr(H+4*g+2*k)}, {vr(H+4*g+2*k)}, {vr(64)}")
        e(f"v_add_f32 {vr(H+4*g+2*k+1)}, {vr(H+4*g+2*k+1)}, {vr(65)}")
e("s_waitcnt lgkmcnt(0)")
for i in range(16): e(f"v_add_f32 {vr(H+i)}, {vr(H+i)}, {vr(48+i)}")
G = 64
e(f"v_add_f32 {vr(G)}, {vr(H)}, {vr(H+1)}")
e(f"v_mul_f32 {vr(G+1)}, {vr(H)}, {vr(H)}")
e(f"v_fmac_f32 {vr(G+1)}, {vr(H+1)}, {vr(H+1)}")
for i in range(2, 16):
    e(f"v_add_f32 {vr(G)}, {vr(G)}, {vr(H+i)}")
    e(f"v_fmac_f32 {vr(G+1)}, {vr(H+i)}, {vr(H+i)}")
halfsum(G, G+2)
halfsum(G+1, G+3)
e(f"v_mov_b32 {vr(G+2)}, {vr(vEp)}")
e(f"v_mov_b32 {vr(G+3)}, {vr(vEp)}")
e(f"s_lshl_b32 {sr(sT0)}, {sr(sRec)}, 9")
e(f"s_add_u32 {sr(sT0)}, {sr(sT0)}, {ST}")
e("s_mov_b32 exec_hi, 0")
e(f"buffer_store_dwordx4 {vr(G,4)}, {vr(vL16)}, {sr(SWS,4)}, {sr(sT0)} offen sc1")
e("s_mov_b64 exec, -1")
stamp(6)
w2_issue(20, 27)
e(f"s_lshl_b32 {sr(sT0)}, {sr(sTile)}, 13")
e(f"s_add_u32 {sr(sT0)}, {sr(sT0)}, {ST}")
e(f"s_add_u32 {sr(sT1)}, {sr(sT0)}, 4096")
lst = spin_head()
for u in range(8):
    e(f"buffer_load_dwordx4 {vr(72+4*u,4)}, {vr(vL16)}, {sr(SWS,4)}, {sr(sT0 if u < 4 else sT1)} offen offset:{(u&3)*1024} sc1")
e("s_waitcnt vmcnt(0)")
e(f"v_xor_b32 {vr(vTmp)}, {vr(vEp)}, {vr(72+2)}")
for u in range(1, 8):
    e(f"v_xor_b32 {vr(vTmp2)}, {vr(vEp)}, {vr(72+4*u+2)}")
    e(f"v_or_b32 {vr(vTmp)}, {vr(vTmp)}, {vr(vTmp2)}")
e(f"v_cmp_ne_u32 vcc, 0, {vr(vTmp)}")
spin_tail(lst)
for u in range(1, 8):
    e(f"v_add_f32 {vr(72)}, {vr(72)}, {vr(72+4*u)}")
    e(f"v_add_f32 {vr(73)}, {vr(73)}, {vr(72+4*u+1)}")
halfsum(72, 74)
halfsum(73, 75)
e(f"v_mul_f32 {vr(72)}, {f32(1.0/512)}, {vr(72)}")
e(f"v_mul_f32 {vr(73)}, {f32(1.0/512)}, {vr(73)}")
e(f"v_fma_f32 {vr(73)}, -{vr(72)}, {vr(72)}, {vr(73)}")
e(f"v_max_f32 {vr(73)}, 0, {vr(73)}")
e(f"v_add_f32 {vr(74)}, {f32(1e-5)}, {vr(73)}")
e(f"v_rsq_f32 {vr(74)}, {vr(74)}")
e(f"v_mul_f32 {vr(73)}, {vr(73)}, {vr(74)}")
e(f"v_mul_f32 {vr(73)}, {vr(73)}, {vr(74)}")
e(f"v_add_f32 {vr(73)}, {f32(1e-5)}, {vr(73)}")
e(f"v_rsq_f32 {vr(73)}, {vr(73)}")
e(f"v_mul_f32 {vr(74)}, {vr(74)}, {vr(73)}")
e(f"v_mul_f32 {vr(72)}, {vr(72)}, {vr(74)}")
for i in range(16): e(f"v_fma_f32 {vr(32+i)}, {vr(H+i)}, {vr(74)}, -{vr(72)}")
for j in range(8): e(f"v_cvt_pk_bf16_f32 {vr(48+j)}, {vr(32+2*j)}, {vr(32+2*j+1)}")
e(f"s_lshl_b32 {sr(sT1)}, {sr(sW)}, 12")
e(f"s_add_u32 {sr(sT1)}, {sr(sT1)}, {XCH}")
e(f"v_lshrrev_b32 {vr(vTmp)}, 4, {vr(vRow)}")
e(f"v_and_b32 {vr(vTmp2)}, 8, {vr(vRow)}")
e(f"v_add3_u32 {vr(vTmp)}, {vr(vTmp)}, {vr(vTmp2)}, {sr(sT1)}")
for g in range(4): e(f"ds_write_b64 {vr(vTmp)}, {vr(48+2*g,2)} offset:{16*g}")
e(f"v_add_u32 {vr(vTmp2)}, {sr(sT1)}, {vr(vTrB)}")
e("s_waitcnt lgkmcnt(0)")
for k in range(2):
    for r in range(2): e(f"ds_read_b64_tr_b16 {vr(56+4*k+2*r,2)}, {vr(vTmp2)} offset:{k*1024 + r*256}")
e(f"s_lshl_b32 {sr(sT0)}, {sr(sCq)}, 1")
e(f"s_add_u32 {sr(sT0)}, {sr(sT0)}, {sr(sHi)}")
e(f"s_lshl_b32 {sr(sT0)}, {sr(sT0)}, 6")
e(f"s_add_u32 {sr(sT0)}, {sr(sT0)}, {sr(sTile)}")
e(f"s_lshl_b32 {sr(sT1)}, {sr(sT0)}, 11")
e(f"s_add_u32 {sr(sT1)}, {sr(sT1)}, {HN}")
e("s_waitcnt lgkmcnt(0)")
for k in range(2): e(f"buffer_store_dwordx4 {vr(56+4*k,4)}, {vr(vL16)}, {sr(SWS,4)}, {sr(sT1)} offen offset:{1024*k} sc1")
e(f"s_lshl_b32 {sr(sT0)}, {sr(sT0)}, 7")
e(f"s_add_u32 {sr(sT0)}, {sr(sT0)}, {F_HN}")
publish(sT0)
stamp(7)
e(f"v_lshrrev_b32 {vr(vTmp)}, 9, {vr(vRow)}")
e(f"s_lshl_b32 {sr(sT0)}, {sr(sTile)}, 6")
e(f"buffer_load_ushort {vr(vTmp2)}, {vr(vTmp)}, {sr(SB2,4)}, {sr(sT0)} offen")
e("s_waitcnt vmcnt(0)")
e(f"v_lshlrev_b32 {vr(vTmp2)}, 16, {vr(vTmp2)}")
for i in range(16): e(f"v_add_f32 {vr(H+i)}, {vr(H+i)}, {vr(vTmp2)}")

RED = 98304
e(f"s_cmp_eq_u32 {sr(sFb)}, 15")
e("s_cbranch_scc1 Lp4skip")
e(f"v_and_b32 {vr(vTmp2)}, 15, {vr(vLane)}")
e(f"v_lshlrev_b32 {vr(vTmp2)}, 7, {vr(vTmp2)}")
e(f"s_lshl_b32 {sr(sT0)}, {sr(sFb)}, 2")
e(f"s_add_u32 {sr(sT0)}, {sr(sT0)}, {sr(sW)}")
e(f"s_lshl_b32 {sr(sT1)}, {sr(sT0)}, 11")
e(f"s_add_u32 {sr(sT1)}, {sr(sT1)}, {F_W1}")
poll(vTmp2, sT1)
sWp, sHp = sT4, sT5
e(f"s_mul_i32 {sr(sWp)}, {sr(sT0)}, {32*3072}")
e(f"s_add_u32 {sr(sWp)}, {sr(sWp)}, {W1P}")
NA = 20
def w1reg(t, b):
    if t < NA: return ar(16 + (t*3+b)*4, 4)
    return vr(112 + ((t-NA)*3+b)*4, 4)
NV = 12
def w1_load(t):
    for b in range(3):
        e(f"buffer_load_dwordx4 {w1reg(t,b)}, {vr(vL16)}, {sr(SWS,4)}, {sr(sWp)} offen offset:{b*1024} sc1")
    e(f"s_add_u32 {sr(sWp)}, {sr(sWp)}, 3072")
if PROF:
    e("v_accvgpr_write_b32 a12, v255")
for t in range(NA): w1_load(t)
e("s_waitcnt vmcnt(20)")
for t in range(NA, 32): w1_load(t)
e(f"v_and_b32 {vr(vTmp3)}, 8, {vr(vRow)}")
e(f"s_mul_i32 {sr(sT2)}, {sr(sFb)}, 192")
e(f"s_mul_i32 {sr(sT3)}, {sr(sW)}, 48")
e(f"s_add_u32 {sr(sT2)}, {sr(sT2)}, {sr(sT3)}")
for i in range(3): e(f"buffer_load_dwordx2 {ar(aXr+2*i,2)}, {vr(vTmp3)}, {sr(SB1,4)}, {sr(sT2)} offen offset:{16*i}")
e(f"s_lshl_b32 {sr(sT0)}, {sr(sDt)}, 2")
e(f"s_add_u32 {sr(sT0)}, {sr(sT0)}, {sr(sW)}")
e(f"s_lshl_b32 {sr(sT1)}, {sr(sT0)}, 11")
e(f"s_add_u32 {sr(sT1)}, {sr(sT1)}, {F_HN}")
poll(vTmp2, sT1)
if PROF:
    e(f"s_memrealtime {sr(100,2)}")
e(f"s_lshl_b32 {sr(sHp)}, {sr(sT0)}, 15")
e(f"s_add_u32 {sr(sHp)}, {sr(sHp)}, {HN}")
UA = [32, 48, 64]
HB = 80; NH = 8
def hn_load(t):
    e(f"buffer_load_dwordx4 {vr(HB+4*(t%NH),4)}, {vr(vL16)}, {sr(SWS,4)}, {sr(sHp)} offen offset:{(t&3)*1024} sc1")
    if t & 3 == 3: e(f"s_add_u32 {sr(sHp)}, {sr(sHp)}, 4096")
for t in range(NH): hn_load(t)
for t in range(32):
    e(f"s_waitcnt vmcnt({min(NH-1, 31-t)})")
    for b in range(3): mfma32(vr(UA[b],16), w1reg(t,b), vr(HB+4*(t%NH),4), "0" if t == 0 else vr(UA[b],16))
    if t + NH < 32: hn_load(t+NH)
if PROF:
    e("v_accvgpr_read_b32 v255, a12")
    e("s_waitcnt lgkmcnt(0)")
    e(f"v_writelane_b32 v255, s100, 8")
stamp(9)
e(f"s_mul_i32 {sr(sT0)}, {sr(sW)}, 3072")
e(f"s_add_u32 {sr(sT0)}, {sr(sT0)}, {XCH}")
e(f"v_add_u32 {vr(vTmp)}, {sr(sT0)}, {vr(vL16)}")
lab("Lp4skip")
e("s_barrier")
e(f"s_cmp_eq_u32 {sr(sFb)}, 15")
e("s_cbranch_scc1 Lp4skip2")
for q in range(12): e(f"ds_write_b128 {vr(vTmp)}, {vr(32+4*q,4)} offset:{(q//3)*12288 + (q%3)*1024}")
lab("Lp4skip2")
vT5 = [13, 14]
e(f"s_lshl_b32 {sr(sT2)}, {sr(sLo)}, 6")
e(f"v_xor_b32 {vr(vT5[0])}, {sr(sT2)}, {vr(vTrP)}")
e(f"v_xor_b32 {vr(vT5[1])}, 64, {vr(vT5[0])}")
vB = [[232, 233], [234, 235], [236, 237]]
for bi, (j0, base) in enumerate(((0, 0), (20, 135168), (27, 81920))):
    stride = w2addr(1, j0) - w2addr(0, j0)
    e(f"s_mul_i32 {sr(sT2)}, {sr(sLo)}, {stride}")
    e(f"s_add_u32 {sr(sT2)}, {sr(sT2)}, {base}")
    for k in range(2): e(f"v_add_u32 {vr(vB[bi][k])}, {sr(sT2)}, {vr(vT5[k])}")
def w2_reads(j, dst):
    bi, base = (0, 0) if (j < 20 or j >= 40) else (1, 135168) if j < 27 else (2, 81920)
    for k in range(2):
        for r in range(2):
            e(f"ds_read_b64_tr_b16 {vr(dst+4*k+2*r,2)}, {vr(vB[bi][k])} offset:{w2addr(0,j)-base + r*1024}")
for j in range(3): w2_reads(j, 208 + 8*j)
e("s_waitcnt lgkmcnt(0)")
e("s_barrier")
e(f"s_cmp_eq_u32 {sr(sFb)}, 15")
e("s_cbranch_scc1 Lp4skip3")
e(f"s_mul_i32 {sr(sT0)}, {sr(sW)}, 12288")
e(f"s_add_u32 {sr(sT0)}, {sr(sT0)}, {XCH}")
e(f"v_add_u32 {vr(vTmp)}, {sr(sT0)}, {vr(vL16)}")
for src in range(4):
    for i in range(3): e(f"ds_read_b128 {vr(80+12*src+4*i,4)}, {vr(vTmp)} offset:{src*3072 + i*1024}")
for i in range(6):
    e(f"v_accvgpr_read_b32 {vr(vTmp3)}, {ar(aXr+i)}")
    e(f"v_lshlrev_b32 {vr(32+2*i)}, 16, {vr(vTmp3)}")
    e(f"v_and_b32 {vr(33+2*i)}, 0xffff0000, {vr(vTmp3)}")
e("s_waitcnt lgkmcnt(0)")
for src in range(4):
    for i in range(12): e(f"v_add_f32 {vr(32+i)}, {vr(32+i)}, {vr(80+12*src+i)}")
C0 = -2.0*0.7978845608028654*1.4426950408889634
e(f"s_mov_b32 {sr(sT2)}, {f32(C0*0.044715)}")
e(f"v_mov_b32 {vr(vTmp3)}, {f32(C0)}")
for i in range(12): e(f"v_mul_f32 {vr(48+i)}, {vr(32+i)}, {vr(32+i)}")
for i in range(12): e(f"v_fma_f32 {vr(48+i)}, {vr(48+i)}, {sr(sT2)}, {vr(vTmp3)}")
for i in range(12): e(f"v_mul_f32 {vr(48+i)}, {vr(48+i)}, {vr(32+i)}")
for i in range(12): e(f"v_exp_f32 {vr(48+i)}, {vr(48+i)}")
for i in range(12): e(f"v_add_f32 {vr(48+i)}, 1.0, {vr(48+i)}")
for i in range(12): e(f"v_rcp_f32 {vr(48+i)}, {vr(48+i)}")
for i in range(12): e(f"v_mul_f32 {vr(32+i)}, {vr(32+i)}, {vr(48+i)}")
for j in range(6): e(f"v_cvt_pk_bf16_f32 {vr(48+j)}, {vr(32+2*j)}, {vr(32+2*j+1)}")
e(f"s_mul_i32 {sr(sT0)}, {sr(sDt)}, {96*1024}")
e(f"s_mul_i32 {sr(sT1)}, {sr(sFb)}, 6144")
e(f"s_add_u32 {sr(sT0)}, {sr(sT0)}, {sr(sT1)}")
e(f"s_add_u32 {sr(sT0)}, {sr(sT0)}, {UB}")
for i in range(3):
    e(f"s_mul_i32 {sr(sT1)}, {sr(sW)}, 3")
    e(f"s_add_u32 {sr(sT1)}, {sr(sT1)}, {i}")
    e(f"s_and_b32 {sr(sT2)}, {sr(sT1)}, 1")
    e(f"s_lshl_b32 {sr(sT2)}, {sr(sT2)}, 3")
    e(f"s_lshr_b32 {sr(sT1)}, {sr(sT1)}, 1")
    e(f"s_lshl_b32 {sr(sT1)}, {sr(sT1)}, 10")
    e(f"s_add_u32 {sr(sT1)}, {sr(sT1)}, {sr(sT2)}")
    e(f"s_add_u32 {sr(sT1)}, {sr(sT1)}, {sr(sT0)}")
    e(f"buffer_store_dwordx2 {vr(48+2*i,2)}, {vr(vL16)}, {sr(SWS,4)}, {sr(sT1)} offen sc1")
e(f"s_lshl_b32 {sr(sT0)}, {sr(sDt)}, 4")
e(f"s_add_u32 {sr(sT0)}, {sr(sT0)}, {sr(sFb)}")
e(f"s_lshl_b32 {sr(sT0)}, {sr(sT0)}, 2")
e(f"s_add_u32 {sr(sT0)}, {sr(sT0)}, {sr(sW)}")
e(f"s_lshl_b32 {sr(sT0)}, {sr(sT0)}, 7")
e(f"s_add_u32 {sr(sT0)}, {sr(sT0)}, {F_U}")
publish(sT0)
lab("Lp4skip3")
stamp(10)
e("s_barrier")
w2_issue(27, 40)
w2_issue(40, 43)

e(f"s_lshl_b32 {sr(sT0)}, {sr(sCq)}, 1")
e(f"s_add_u32 {sr(sT0)}, {sr(sT0)}, {sr(sHi)}")
e(f"s_lshl_b32 {sr(sT1)}, {sr(sT0)}, 13")
e(f"s_mul_i32 {sr(sT2)}, {sr(sLo)}, {7*4*128}")
e(f"s_add_u32 {sr(sT1)}, {sr(sT1)}, {sr(sT2)}")
e(f"s_add_u32 {sr(sT1)}, {sr(sT1)}, {F_U}")
e(f"v_and_b32 {vr(vTmp2)}, 31, {vr(vLane)}")
e(f"v_lshlrev_b32 {vr(vTmp2)}, 7, {vr(vTmp2)}")
poll(vTmp2, sT1)
stamp(11)
e(f"s_mul_i32 {sr(sT0)}, {sr(sT0)}, {96*1024}")
e(f"s_mul_i32 {sr(sT2)}, {sr(sLo)}, {43*1024}")
e(f"s_add_u32 {sr(sT0)}, {sr(sT0)}, {sr(sT2)}")
e(f"s_add_u32 {sr(sT0)}, {sr(sT0)}, {UB}")
for j in range(43):
    e(f"buffer_load_dwordx4 {ar(16+4*j,4)}, {vr(vL16)}, {sr(SWS,4)}, {sr(sT0)} offen offset:{(j&3)*1024} sc1")
    if j & 3 == 3: e(f"s_add_u32 {sr(sT0)}, {sr(sT0)}, 4096")
e("s_barrier")
def w5(j): return 208 + 8*j if j < 3 else 192 + 8*(j & 1)
for j in range(43):
    if 3 <= j+1 < 43: w2_reads(j+1, w5(j+1))
    lg = 4 if 3 <= j+1 < 43 else 0
    e(f"s_waitcnt vmcnt({42-j}) lgkmcnt({lg})")
    mfma32(vr(HO,16), ar(16+4*j,4), vr(w5(j)+4,4), "0" if j == 0 else vr(HO,16))
    mfma32(vr(H,16), ar(16+4*j,4), vr(w5(j),4), vr(H,16))
stamp(12)
e("s_barrier")
exchange(1, HO, 48)
e("s_waitcnt lgkmcnt(0)")
for i in range(16): e(f"v_add_f32 {vr(H+i)}, {vr(H+i)}, {vr(48+i)}")
for j in range(8): e(f"v_cvt_pk_bf16_f32 {vr(48+j)}, {vr(H+2*j)}, {vr(H+2*j+1)}")
for g in range(4):
    e(f"buffer_store_dwordx2 {vr(48+2*g,2)}, {vr(vRow)}, {sr(SOUT,4)}, {sr(sXO)} offen offset:{16*g}")
e(f"s_or_b32 {sr(sT0)}, s2, {sr(sW)}")
e(f"s_cmp_lg_u32 {sr(sT0)}, 0")
e("s_cbranch_scc1 Lnoep")
e("s_mov_b64 exec, 1")
e(f"buffer_store_dword {vr(vEp)}, {vr(vZero)}, {sr(SWS,4)}, 0 offen")
e("s_mov_b64 exec, -1")
lab("Lnoep")
if PROF:
    e("s_waitcnt vmcnt(0)")
    stamp(13)
    e(f"s_lshl_b32 {sr(sT0)}, s2, 2")
    e(f"s_add_u32 {sr(sT0)}, {sr(sT0)}, {sr(sW)}")
    e(f"s_lshl_b32 {sr(sT0)}, {sr(sT0)}, 8")
    e(f"s_add_u32 {sr(sT0)}, {sr(sT0)}, {PR}")
    e(f"v_lshlrev_b32 {vr(vTmp)}, 2, {vr(vLane)}")
    e(f"buffer_store_dword v255, {vr(vTmp)}, {sr(SWS,4)}, {sr(sT0)} offen")
lab("Lend")
e("s_endpgm")

body, nn = hz.fix(L, verbose="-v" in sys.argv)
hdr = open("cdna_kernels/" + NAME + ".s.ref").read().split("; Override launch")[0]
out = hdr + "; @launch grid=(256,1,1) block=(256,1,1) lds=163840\n"
out += f""".amdgcn_target "amdgcn-amd-amdhsa--gfx950"
.text
.globl {NAME}_kernel
.p2align 8
.type {NAME}_kernel,@function
{NAME}_kernel:
""" + "\n".join(body) + f"""
.section .rodata,"a"
.p2align 6
.amdhsa_kernel {NAME}_kernel
  .amdhsa_next_free_vgpr 512
  .amdhsa_next_free_sgpr 102
  .amdhsa_accum_offset 256
  .amdhsa_group_segment_fixed_size 0
  .amdhsa_kernarg_size 88
  .amdhsa_user_sgpr_count 2
  .amdhsa_user_sgpr_kernarg_segment_ptr 1
  .amdhsa_system_sgpr_workgroup_id_x 1
.end_amdhsa_kernel
"""
fn = [a for a in sys.argv[1:] if not a.startswith("-")][0]
open(fn, "w").write(out)
print(f"wrote {fn}: {len(body)} lines, {nn} nop states inserted")
```

```python
import sys, struct
import hz
NAME = "sequential_preLN__sliding_block__mixer_token_mlp__prompt"
PROF = "--prof" in sys.argv
NOPF = "--nopf" in sys.argv
L = []
def e(s): L.append("    " + s)
def lab(s): L.append(s + ":")
def vr(a, n=1): return f"v{a}" if n == 1 else f"v[{a}:{a+n-1}]"
def sr(a, n=1): return f"s{a}" if n == 1 else f"s[{a}:{a+n-1}]"
def f32(x): return "0x%08x" % struct.unpack("<I", struct.pack("<f", x))[0]
def mfma32(d, a, b, c=None): e(f"v_mfma_f32_32x32x16_bf16 {vr(d,16)}, {vr(a,4)}, {vr(b,4)}, {'0' if c is None else vr(c,16)}")
def mfma16(d, a, b): e(f"v_mfma_f32_16x16x32_bf16 {vr(d,4)}, {vr(a,4)}, {vr(b,4)}, {vr(d,4)}")
_uid = [0]
def uid(p):
    _uid[0] += 1
    return f"L{p}_{_uid[0]}"
class Q:
    def __init__(s): s.q = []
    def add(s, tag): s.q.append(tag)
    def n(s, *tags):
        last = max(i for i, t in enumerate(s.q) if t in tags)
        return len(s.q) - 1 - last

M_KV, M_O, M_ST, M_HN, M_U, M_W1 = 0x10000, 0x20000, 0x30000, 0x40000, 0x50000, 0x60000
ST, PR = 0x100000, 0x180000
KV, OB, HN, UB, W1P = 0x200000, 0x600000, 0x800000, 0xA00000, 0xC00000
WS_BYTES = 0x1200000
SLOT = 32768
SS = 86016
CNT = 98304 - 128
WOL = 98304
SCR = 0
R1, R2 = 49152, 98304
REC = 4128; TS = 2*REC
KOFF = [0, 1024]; VOFF = [2048, 3088]
(C_ATT, C_WO, C_BW, C_BR, C_P3, C_ER, C_W2, C_BD, C_WOR, C_HALO,
 P_KV, P_O, P_ST, P_HN, P_U, P_W1, G_KV, G_O, G_ST, G_HN, G_U, G_W1) = range(22)
C_X1, C_X2 = 22, 26
SX, SWQKV, SWO, SW1, SW2, SOUT, SWS, SB1, SB2 = 8, 12, 16, 20, 24, 28, 32, 36, 40
sEp, sW, sRb, sCq, sFb, sDt = 44, 45, 46, 47, 48, 49
sT0, sT1, sT2, sT3, sT4, sT5, sT6, sT7 = 50, 51, 52, 53, 54, 55, 56, 57
sLo, sHi = 58, 59
sRot, sXO, sTile, sRec = 60, 61, 62, 63
sMask = 64
sTime = 96
sI, sSlot, sW8, sW2, sRid = 3, 4, 5, 6, 7
sFid = 98
vL16, vEp, vLane, vL4, vTmp, vTmp2, vTmp3 = 1, 2, 3, 4, 5, 6, 7
vXr = 240
vTrA, vTrB, vRow, vCnt, vOne, vSw, vB2 = 248, 249, 250, 251, 252, 253, 254
SPIN = 20000

def stamp(i):
    if not PROF: return
    e(f"s_memrealtime {sr(sTime,2)}")
    e(f"s_memtime s[100:101]")
    e("s_waitcnt lgkmcnt(0)")
    e(f"v_writelane_b32 v255, {sr(sTime)}, {i}")
    e(f"v_writelane_b32 v255, s100, {i+32}")
def spin_head(n=SPIN):
    l = uid("spin")
    e(f"s_mov_b32 s99, {n}")
    lab(l)
    return l
def spin_tail(l):
    e("s_sub_u32 s99, s99, 1")
    e(f"s_cbranch_scc1 {l}x")
    e(f"s_cbranch_vccnz {l}")
    lab(l + "x")
def signal(c, vaddr=None):
    e("s_mov_b64 exec, 1")
    e(f"ds_add_u32 {vr(vCnt if vaddr is None else vaddr)}, {vr(vOne)} offset:{4*c}")
    e("s_mov_b64 exec, -1")
def lwait(c, n, sleep=0, vaddr=None):
    l = spin_head(SPIN*50)
    if sleep: e(f"s_sleep {sleep}")
    e(f"ds_read_b32 {vr(vTmp)}, {vr(vCnt if vaddr is None else vaddr)} offset:{4*c}")
    e("s_waitcnt lgkmcnt(0)")
    e(f"v_cmp_gt_u32 vcc, {n}, {vr(vTmp)}")
    spin_tail(l)
def push(pc, voff, soff, nl, drain=0):
    l = uid("push")
    if drain is not None: e(f"s_waitcnt vmcnt({drain})")
    e("s_mov_b64 exec, 1")
    e(f"ds_add_rtn_u32 {vr(vTmp)}, {vr(vCnt)}, {vr(vOne)} offset:{4*pc}")
    e("s_waitcnt lgkmcnt(0)")
    e(f"v_cmp_eq_u32 vcc, 3, {vr(vTmp)}")
    e(f"s_cbranch_vccz {l}")
    e(f"s_mov_b32 exec_lo, {hex((1 << nl) - 1)}")
    e(f"buffer_store_dword {vr(vEp)}, {vr(voff)}, {sr(SWS,4)}, {sr(soff)} offen sc1")
    lab(l)
    e("s_mov_b64 exec, -1")
def gather(gc, mb, sid, mask, sleep=0):
    lo, lx = uid("go"), uid("gx")
    e(f"s_cmp_lg_u32 {sr(sW)}, 0")
    e(f"s_cbranch_scc1 {lo}")
    e(f"s_add_u32 {sr(sT3)}, {sr(sid)}, {mb}")
    e("s_mov_b32 exec_hi, 0")
    e(f"s_mov_b32 exec_lo, {mask if isinstance(mask, str) else hex(mask)}")
    l = spin_head()
    e(f"buffer_load_dword {vr(vTmp)}, {vr(vL4)}, {sr(SWS,4)}, {sr(sT3)} offen sc1")
    e("s_waitcnt vmcnt(0)")
    e(f"v_cmp_ne_u32 vcc, {vr(vTmp)}, {vr(vEp)}")
    spin_tail(l)
    signal(gc)
    e(f"s_branch {lx}")
    lab(lo)
    lwait(gc, 1, sleep)
    lab(lx)
def halfop(v, t, op="v_add_f32"):
    e(f"v_mov_b32 {vr(t)}, {vr(v)}")
    e(f"v_permlane32_swap_b32 {vr(v)}, {vr(t)}")
    e(f"{op} {vr(v)}, {vr(v)}, {vr(t)}")
def dma(voff, srd, soff, m0base, m0imm, off=0, fl="", mid=None):
    imm = m0imm - off
    if imm >= 0: e(f"s_add_u32 m0, {sr(m0base)}, {imm}")
    else: e(f"s_sub_u32 m0, {sr(m0base)}, {-imm}")
    if mid: e(mid)
    o = f" offset:{off}" if off else ""
    e(f"buffer_load_dwordx4 {vr(voff)}, {sr(srd,4)}, {sr(soff)} offen{o} {fl} lds".replace("  ", " "))
def ldws(dst, soff, off=0):
    o = f" offset:{off}" if off else ""
    e(f"buffer_load_dwordx4 {vr(dst,4)}, {vr(vL16)}, {sr(SWS,4)}, {sr(soff)} offen{o} sc1")
def stws(src, soff, off=0):
    o = f" offset:{off}" if off else ""
    e(f"buffer_store_dwordx4 {vr(src,4)}, {vr(vL16)}, {sr(SWS,4)}, {sr(soff)} offen{o} sc1")
def trr(dst, va, off): e(f"ds_read_b64_tr_b16 {vr(dst,2)}, {vr(va)} offset:{off}")
def rd128(dst, va, off=0): e(f"ds_read_b128 {vr(dst,4)}, {vr(va)} offset:{off}")
def wr128(va, src, off=0): e(f"ds_write_b128 {vr(va)}, {vr(src,4)} offset:{off}")
def cvt(d, a): e(f"v_cvt_pk_bf16_f32 {vr(d)}, {vr(a)}, {vr(a+1)}")
def pkmul_s(d, a, s):
    assert s % 2 == 0
    e(f"v_pk_mul_f32 {vr(d,2)}, {vr(a,2)}, {vr(s,2)} op_sel_hi:[1,0]")
def pkadd(d, a, b): e(f"v_pk_add_f32 {vr(d,2)}, {vr(a,2)}, {vr(b,2)}")
def interleave(main, fill):
    n = len(main); k = 0
    for i, m in enumerate(main):
        m()
        tgt = (len(fill) * (i + 1)) // n
        while k < tgt: fill[k](); k += 1
def w2addr(kh, j):
    if j < 16: return R2 + (kh*16 + j) * 2048
    if j < 27: return R1 + (kh*11 + j-16) * 2048
    return R2 + (kh*16 + j-27) * 2048
def w2_issue(j0, j1, vD):
    if NOPF: return
    stride = w2addr(1, j0) - w2addr(0, j0)
    e(f"s_mul_i32 {sr(sT1)}, {sr(sHi)}, {stride}")
    e(f"s_lshl_b32 {sr(sT0)}, {sr(sLo)}, 10")
    e(f"s_add_u32 {sr(sT1)}, {sr(sT1)}, {sr(sT0)}")
    for j in range(j0, j1):
        dma(vD, SW2, sT0, sT1, w2addr(0, j), mid=f"s_add_u32 {sr(sT0)}, {sr(sW2)}, {j*65536}")

e("s_cmp_ge_u32 s2, 256")
e("s_cbranch_scc1 Lend")
if PROF:
    e("v_mov_b32 v255, 0")
    stamp(0)
e(f"s_load_dwordx2 {sr(SX,2)}, s[0:1], 0")
e(f"s_load_dwordx2 {sr(SWQKV,2)}, s[0:1], 8")
e(f"v_and_b32 {vr(vLane)}, 63, v0")
e(f"v_lshrrev_b32 {vr(vTmp)}, 6, v0")
e(f"v_lshlrev_b32 {vr(vL16)}, 4, {vr(vLane)}")
e(f"v_readfirstlane_b32 {sr(sW8)}, {vr(vTmp)}")
for srd, nb in ((SX,2097152),(SWQKV,1572864)):
    e(f"s_mov_b32 {sr(srd+2)}, {nb}")
    e(f"s_mov_b32 {sr(srd+3)}, 0x20000")
e(f"s_bfe_u32 {sr(sT2)}, s2, 0x20001")
e(f"s_and_b32 {sr(sT3)}, s2, 1")
e(f"s_bfe_u32 {sr(sT4)}, s2, 0x30003")
e(f"s_lshr_b32 {sr(sT5)}, s2, 6")
e(f"s_lshl_b32 {sr(sRb)}, {sr(sT2)}, 3")
e(f"s_add_u32 {sr(sRb)}, {sr(sRb)}, {sr(sT4)}")
e(f"s_lshl_b32 {sr(sCq)}, {sr(sT3)}, 2")
e(f"s_add_u32 {sr(sCq)}, {sr(sCq)}, {sr(sT5)}")
e(f"s_lshl_b32 {sr(sRot)}, {sr(sT5)}, 1")
e(f"s_add_u32 {sr(sRot)}, {sr(sRot)}, {sr(sT4)}")
e(f"s_add_u32 {sr(sRot)}, {sr(sRot)}, {sr(sT3)}")
e(f"s_and_b32 {sr(sW)}, {sr(sW8)}, 3")
e(f"v_bfe_u32 {vr(vTmp)}, {vr(vLane)}, 4, 1")
e(f"v_lshlrev_b32 {vr(vTmp)}, 6, {vr(vTmp)}")
e(f"v_and_b32 {vr(vSw)}, 0x70, {vr(vL16)}")
e(f"v_xor_b32 {vr(vSw)}, {vr(vSw)}, {vr(vTmp)}")
e(f"s_cmp_lt_u32 {sr(sW8)}, 4")
e("s_cbranch_scc1 LA")
LHEAD = L[:]; del L[:]

def setup2():
    for srd, off in ((SWS,80),(SWO,16),(SW1,32),(SB1,40),(SW2,48),(SB2,56),(SOUT,64)):
        e(f"s_load_dwordx2 {sr(srd,2)}, s[0:1], {off}")
    for srd, nb in ((SWO,524288),(SW1,5636096),(SB1,2752),(SW2,5636096),(SB2,4096),(SOUT,2097152),(SWS,WS_BYTES)):
        e(f"s_mov_b32 {sr(srd+2)}, {nb}")
        e(f"s_mov_b32 {sr(srd+3)}, 0x20000")
    e(f"v_lshlrev_b32 {vr(vL4)}, 2, {vr(vLane)}")
    e(f"s_bfe_u32 {sr(sT0)}, s2, 0x20001")
    e(f"s_bfe_u32 {sr(sT1)}, s2, 0x20003")
    e(f"s_lshl_b32 {sr(sFb)}, {sr(sT0)}, 2")
    e(f"s_add_u32 {sr(sFb)}, {sr(sFb)}, {sr(sT1)}")
    e(f"s_lshr_b32 {sr(sT1)}, s2, 5")
    e(f"s_and_b32 {sr(sDt)}, s2, 1")
    e(f"s_lshl_b32 {sr(sDt)}, {sr(sDt)}, 3")
    e(f"s_add_u32 {sr(sDt)}, {sr(sDt)}, {sr(sT1)}")
    e(f"s_and_b32 {sr(sLo)}, {sr(sW)}, 1")
    e(f"s_lshr_b32 {sr(sHi)}, {sr(sW)}, 1")
    e("s_waitcnt lgkmcnt(0)")
    e(f"s_load_dword {sr(sEp)}, {sr(SWS,2)}, 0")
    e(f"v_bfe_u32 {vr(vTmp)}, {vr(vLane)}, 2, 2")
    e(f"v_bfe_u32 {vr(vTmp2)}, {vr(vLane)}, 4, 1")
    e(f"v_lshlrev_b32 {vr(vTmp2)}, 5, {vr(vTmp2)}")
    e(f"v_and_b32 {vr(vTmp3)}, 3, {vr(vLane)}")
    e(f"v_lshl_add_u32 {vr(vTmp2)}, {vr(vTmp3)}, 3, {vr(vTmp2)}")
    e(f"v_lshl_add_u32 {vr(vTrA)}, {vr(vTmp)}, 7, {vr(vTmp2)}")
    e(f"v_lshl_add_u32 {vr(vTrB)}, {vr(vTmp)}, 6, {vr(vTmp2)}")
    e(f"v_lshrrev_b32 {vr(vTmp)}, 1, {vr(vTmp)}")
    e(f"v_lshl_add_u32 {vr(vTrA)}, {vr(vTmp)}, 6, {vr(vTrA)}")
    e(f"v_lshrrev_b32 {vr(vTmp)}, 5, {vr(vLane)}")
    e(f"v_lshl_add_u32 {vr(vTrB)}, {vr(vTmp)}, 9, {vr(vTrB)}")
    e(f"v_and_b32 {vr(vTmp2)}, 31, {vr(vLane)}")
    e(f"v_lshlrev_b32 {vr(vTmp)}, 3, {vr(vTmp)}")
    e(f"v_lshl_add_u32 {vr(vRow)}, {vr(vTmp2)}, 10, {vr(vTmp)}")
    e(f"v_mov_b32 {vr(vCnt)}, {CNT}")
    e(f"v_mov_b32 {vr(vOne)}, 1")
    e(f"s_lshl_b32 {sr(sTile)}, {sr(sRb)}, 1")
    e(f"s_add_u32 {sr(sTile)}, {sr(sTile)}, {sr(sLo)}")
    e(f"s_lshl_b32 {sr(sRec)}, {sr(sTile)}, 3")
    e(f"s_add_u32 {sr(sRec)}, {sr(sRec)}, {sr(sCq)}")
    e(f"s_lshl_b32 {sr(sRec)}, {sr(sRec)}, 1")
    e(f"s_add_u32 {sr(sRec)}, {sr(sRec)}, {sr(sHi)}")
    e(f"s_mul_i32 {sr(sW2)}, {sr(sHi)}, {43*16*4096}")
    e(f"s_lshl_b32 {sr(sT0)}, {sr(sLo)}, 15")
    e(f"s_add_u32 {sr(sW2)}, {sr(sW2)}, {sr(sT0)}")
    e(f"s_lshl_b32 {sr(sT0)}, {sr(sRb)}, 7")
    e(f"s_add_u32 {sr(sW2)}, {sr(sW2)}, {sr(sT0)}")
    e(f"s_lshl_b32 {sr(sRid)}, {sr(sRb)}, 3")
    e(f"s_add_u32 {sr(sRid)}, {sr(sRid)}, {sr(sCq)}")
    e(f"s_lshl_b32 {sr(sRid)}, {sr(sRid)}, 7")
    e(f"s_lshl_b32 {sr(sFid)}, {sr(sFb)}, 4")
    e(f"s_add_u32 {sr(sFid)}, {sr(sFid)}, {sr(sDt)}")
    e(f"s_lshl_b32 {sr(sFid)}, {sr(sFid)}, 7")
def epoch_fin():
    e("s_waitcnt lgkmcnt(0)")
    e(f"s_mul_i32 {sr(sEp)}, {sr(sEp)}, 1664525")
    e(f"s_add_u32 {sr(sEp)}, {sr(sEp)}, 1013904223")
    e(f"v_mov_b32 {vr(vEp)}, {sr(sEp)}")
def prof_out():
    if not PROF: return
    e("s_waitcnt vmcnt(0)")
    stamp(15)
    e(f"s_lshl_b32 {sr(sT0)}, s2, 3")
    e(f"s_add_u32 {sr(sT0)}, {sr(sT0)}, {sr(sW8)}")
    e(f"s_lshl_b32 {sr(sT0)}, {sr(sT0)}, 8")
    e(f"s_add_u32 {sr(sT0)}, {sr(sT0)}, {PR}")
    e(f"buffer_store_dword v255, {vr(vL4)}, {sr(SWS,4)}, {sr(sT0)} offen")

L.append(".p2align 6")
lab("LA")
e("s_setprio 2")
setup2()
e(f"s_cmp_lg_u32 {sr(sW)}, 0")
e("s_cbranch_scc1 LAnw")
e(f"v_lshlrev_b32 {vr(vTmp)}, 16, {vr(vLane)}")
e("s_mov_b64 exec, 0x2e")
e(f"buffer_load_dword {vr(232)}, {vr(vTmp)}, {sr(SWS,4)}, {sr(sRid)} offen sc1")
e("s_mov_b64 exec, 0x50")
e(f"buffer_load_dword {vr(233)}, {vr(vTmp)}, {sr(SWS,4)}, {sr(sFid)} offen sc1")
e("s_mov_b64 exec, 0x1fe")
e(f"v_lshlrev_b32 {vr(vTmp)}, 21, {vr(vLane)}")
e(f"buffer_load_dword {vr(234)}, {vr(vTmp)}, {sr(SWS,4)}, 0 offen")
e("s_mov_b64 exec, 7")
e(f"buffer_load_dword {vr(235)}, {vr(vTmp)}, {sr(SW1,4)}, 0 offen")
e(f"buffer_load_dword {vr(236)}, {vr(vTmp)}, {sr(SW2,4)}, 0 offen")
e("s_mov_b64 exec, 1")
e(f"buffer_load_dword {vr(237)}, {vr(vTmp)}, {sr(SOUT,4)}, 0 offen")
e(f"buffer_load_dword {vr(238)}, {vr(vTmp)}, {sr(SWO,4)}, 0 offen")
e("s_mov_b64 exec, -1")
lab("LAnw")
e(f"s_lshl_b32 {sr(sT0)}, {sr(sTile)}, 15")
e(f"s_lshl_b32 {sr(sT1)}, {sr(sCq)}, 7")
e(f"s_add_u32 {sr(sT0)}, {sr(sT0)}, {sr(sT1)}")
e(f"s_lshl_b32 {sr(sT1)}, {sr(sHi)}, 6")
e(f"s_add_u32 {sr(sXO)}, {sr(sT0)}, {sr(sT1)}")
accQ, accK, accV = 16, 32, 48
xf = [88, 92]
wf = [[96, 100, 104], [108, 112, 116]]
vXa = [120, 121, 122, 123]; vWa, vWa2, vCs = 124, 125, 126
e(f"v_and_b32 {vr(vTmp)}, 31, {vr(vLane)}")
e(f"v_lshrrev_b32 {vr(vTmp2)}, 5, {vr(vLane)}")
e(f"v_bfe_u32 {vr(vTmp3)}, {vr(vLane)}, 1, 3")
e(f"v_xor_b32 {vr(vTmp3)}, {vr(vTmp3)}, {vr(vTmp2)}")
e(f"v_lshlrev_b32 {vr(vTmp3)}, 4, {vr(vTmp3)}")
e(f"v_lshl_add_u32 {vr(vXa[0])}, {vr(vTmp)}, 7, {vr(vTmp3)}")
e(f"s_lshl_b32 {sr(sT0)}, {sr(sLo)}, 12")
e(f"v_add_u32 {vr(vXa[0])}, {sr(sT0)}, {vr(vXa[0])}")
e(f"s_lshl_b32 {sr(sT1)}, {sr(sLo)}, 6")
e(f"v_xor_b32 {vr(vXa[0])}, {sr(sT1)}, {vr(vXa[0])}")
for t in range(1, 4): e(f"v_xor_b32 {vr(vXa[t])}, {32*t}, {vr(vXa[0])}")
e(f"v_lshl_add_u32 {vr(vWa)}, {vr(vTmp2)}, 10, {vr(vTrA)}")
e(f"s_lshl_b32 {sr(sT1)}, {sr(sHi)}, 6")
e(f"v_xor_b32 {vr(vWa)}, {sr(sT1)}, {vr(vWa)}")
e(f"v_add_u32 {vr(vWa)}, 8192, {vr(vWa)}")
e(f"v_subrev_u32 {vr(vWa2)}, {sr(sT0)}, {vr(vWa)}")
e(f"v_add_u32 {vr(vWa)}, {sr(sT0)}, {vr(vWa)}")
csA = [128, 132, 136]; selA = 140
e(f"v_lshrrev_b32 {vr(vTmp3)}, 2, {vr(vLane)}")
e(f"v_xor_b32 {vr(vTmp3)}, {vr(vTmp3)}, {vr(vLane)}")
e(f"v_and_b32 {vr(vTmp3)}, 4, {vr(vTmp3)}")
e(f"v_cmp_eq_u32 vcc, 0, {vr(vTmp3)}")
e(f"v_mov_b32 {vr(vTmp3)}, 0x3f803f80")
for i in range(128, 140): e(f"v_mov_b32 {vr(i)}, 0")
for i in range(4): e(f"v_cndmask_b32 {vr(selA+i)}, 0, {vr(vTmp3)}, vcc")
e(f"s_lshl_b32 {sr(sT1)}, {sr(sHi)}, 8")
e(f"s_add_u32 {sr(sT1)}, {sr(sT1)}, {SS+512}")
e(f"v_lshl_add_u32 {vr(vCs)}, {vr(vTmp)}, 3, {sr(sT1)}")
e(f"s_lshl_b32 {sr(sT1)}, {sr(sLo)}, 2")
e(f"v_add_u32 {vr(127)}, {sr(sT1)}, {vr(vCs)}")
for i in range(16, 64): e(f"v_mov_b32 {vr(i)}, 0")
S = [16, 32]; NM = [48, 64]; OA = [80, 96]; EE = [112, 128]
Kf = [144, 148]; Vf = [[152, 156], [160, 164]]; P = [168, 176]; PF = [184, 192]; MK = 200
vKa, vVa, mx = 208, [209, 210], [212, 214]
vKl, vVl = 211, [213, 215]
Kx = [216, 220]; Vx = [[224, 228], [232, 236]]
e(f"v_lshlrev_b32 {vr(vTmp2)}, 2, {vr(vTmp2)}")
e(f"v_sub_u32 {vr(vTmp)}, {vr(vTmp)}, {vr(vTmp2)}")
for r in range(16):
    e(f"v_cmp_le_i32 {sr(sMask+2*r,2)}, {8*(r>>2)+(r&3)}, {vr(vTmp)}")
e(f"v_mov_b32 {vr(vTmp2)}, 0xffff")
e(f"v_mov_b32 {vr(vTmp3)}, 0xffff0000")
for j in range(8):
    e(f"v_cndmask_b32 {vr(MK+j)}, 0, {vr(vTmp2)}, {sr(sMask+4*j,2)}")
    e(f"v_cndmask_b32 {vr(vTmp)}, 0, {vr(vTmp3)}, {sr(sMask+4*j+2,2)}")
    e(f"v_or_b32 {vr(MK+j)}, {vr(MK+j)}, {vr(vTmp)}")
e(f"s_lshl_b32 {sr(sT1)}, {sr(sLo)}, 1")
e(f"s_add_u32 {sr(sT1)}, {sr(sT1)}, {sr(sHi)}")
e(f"s_mul_i32 {sr(sT1)}, {sr(sT1)}, {REC}")
e(f"v_add_u32 {vr(vKa)}, {sr(sT1)}, {vr(vL16)}")
e(f"v_and_b32 {vr(vTmp)}, 16, {vr(vLane)}")
e(f"v_cmp_eq_u32 vcc, 0, {vr(vTmp)}")
e(f"s_add_u32 {sr(sT1)}, {sr(sT1)}, 1024")
e(f"v_mov_b32 {vr(vTmp)}, {sr(sT1)}")
e(f"v_cndmask_b32 {vr(vVa[0])}, {vr(vTmp)}, {vr(vKa)}, vcc")
e(f"v_cndmask_b32 {vr(vVa[1])}, {vr(vKa)}, {vr(vTmp)}, vcc")
xa, ra, one2 = 64, 68, 72
wa = [76, 80, 84]
for r in (xa+2, xa+3, ra+1, ra+2, ra+3, wa[0]+2, wa[0]+3, wa[1]+2, wa[1]+3, wa[2]+2, wa[2]+3): e(f"v_mov_b32 {vr(r)}, 0")
for i in range(4): e(f"v_mov_b32 {vr(one2+i)}, 0x3f803f80")
vPk = 216
e(f"v_mul_u32_u24 {vr(vPk)}, 1020, {vr(vLane)}")
e(f"v_sub_u32 {vr(vPk)}, 4096, {vr(vPk)}")
def p1_rd(t):
    b = t & 1
    o = t*2048
    va = vWa if t < 2 else vWa2
    return [lambda: rd128(xf[b], vXa[t]),
            lambda: trr(wf[b][1], va, 8192+o), lambda: trr(wf[b][1]+2, va, 8192+o+512),
            lambda: trr(wf[b][2], va, 16384+o), lambda: trr(wf[b][2]+2, va, 16384+o+512),
            lambda: trr(wf[b][0], va, o), lambda: trr(wf[b][0]+2, va, o+512)]
def adv(v): e(f"v_add_u32 {vr(v)}, {sr(sT0)}, {vr(v)}")
def p1_step(t, rd, w, tail=()):
    b = t & 1
    if w: e("s_waitcnt lgkmcnt(4)")
    mfma32(accK, wf[b][1], xf[b], accK)
    for f in rd[:3]: f()
    if t < 2: mfma16(csA[1], selA, wf[b][1])
    rd[3]()
    if w: e("s_waitcnt lgkmcnt(6)")
    mfma32(accV, xf[b], wf[b][2], accV)
    for f in rd[4:]: f()
    if t < 2: mfma16(csA[2], selA, wf[b][2])
    if w: e("s_waitcnt lgkmcnt(7)")
    mfma32(accQ, wf[b][0], xf[b], accQ)
    for f in tail: f()
    if t < 2: mfma16(csA[0], selA, wf[b][0])
e(f"s_mov_b32 {sr(sI)}, 0")
e(f"s_mov_b32 {sr(sSlot)}, 0")
epoch_fin()
e("s_barrier")
stamp(1)
for f in p1_rd(0): f()
lab("LA1")
p1_step(0, p1_rd(1), True, [lambda: e(f"s_add_u32 {sr(sSlot)}, {sr(sSlot)}, 1"), lambda: e(f"s_mov_b32 {sr(sT0)}, {SLOT}"),
        lambda: e(f"s_cmp_eq_u32 {sr(sSlot)}, 3"), lambda: e(f"s_cselect_b32 {sr(sT0)}, {(-2*SLOT) & 0xffffffff}, {sr(sT0)}"),
        lambda: e(f"s_cselect_b32 {sr(sSlot)}, 0, {sr(sSlot)}")])
p1_step(1, p1_rd(2), True, [lambda: adv(vXa[0]), lambda: adv(vWa), lambda: adv(vXa[1]), lambda: adv(vXa[2]),
        lambda: e(f"s_add_u32 {sr(sI)}, {sr(sI)}, 1")])
p1_step(2, p1_rd(3), True, [lambda: adv(vXa[3]), lambda: adv(vWa2), lambda: e(f"s_cmp_eq_u32 {sr(sI)}, 8")])
e("s_cbranch_scc1 LA1x")
e("s_waitcnt lgkmcnt(0)")
e("s_barrier")
p1_step(3, p1_rd(0), False)
e("s_branch LA1")
lab("LA1x")
for sec in range(3): e(f"ds_write_b32 {vr(127)}, {vr(csA[sec])} offset:{512*sec}")
vMR = 88
cs4 = [96, 100, 104]
e(f"v_lshrrev_b32 {vr(vTmp)}, 7, {vr(vRow)}")
e(f"s_lshl_b32 {sr(sT0)}, {sr(sLo)}, 8")
e(f"s_add_u32 {sr(sT0)}, {sr(sT0)}, {SS}")
e(f"v_add_u32 {vr(vTmp2)}, {sr(sT0)}, {vr(vTmp)}")
e("s_waitcnt lgkmcnt(0)")
mfma32(accK, wf[1][1], xf[1], accK)
e("s_barrier")
stamp(2)
e(f"ds_read_b64 {vr(vMR,2)}, {vr(vTmp2)}")
for sec in (1, 2, 0): e(f"ds_read_b64 {vr(cs4[sec],2)}, {vr(vCs)} offset:{512*sec}")
mfma32(accV, xf[1], wf[1][2], accV)
e(f"v_cmp_gt_u32 vcc, 32, {vr(vLane)}")
e(f"s_mov_b32 {sr(sT0)}, 0xffff")
e(f"s_lshl_b32 {sr(sT2)}, {sr(sRec)}, 12")
e(f"s_add_u32 {sr(sT2)}, {sr(sT2)}, {KV}")
mfma32(accQ, wf[1][0], xf[1], accQ)
def hilo(src, hi, lo):
    e(f"v_cvt_pk_bf16_f32 {vr(hi)}, {vr(src)}, {vr(src)}")
    e(f"v_and_b32 {vr(lo)}, 0xffff0000, {vr(hi)}")
    e(f"v_sub_f32 {vr(lo)}, {vr(src)}, {vr(lo)}")
    e(f"v_cvt_pk_bf16_f32 {vr(lo)}, {vr(lo)}, {vr(lo)}")
def mk_wa(sec):
    c = cs4[sec]
    e(f"v_add_f32 {vr(c)}, {vr(c)}, {vr(c+1)}")
    hilo(c, wa[sec]+1, vTmp2)
    e(f"v_bfi_b32 {vr(wa[sec])}, {sr(sT0)}, {vr(wa[sec]+1)}, {vr(vTmp2)}")
e("s_waitcnt lgkmcnt(3)")
hilo(vMR, vTmp, vTmp2)
e(f"v_cndmask_b32 {vr(xa)}, 0, {vr(vTmp)}, vcc")
e(f"v_and_b32 {vr(vTmp2)}, 0xffff, {vr(vTmp2)}")
e(f"v_cndmask_b32 {vr(xa+1)}, 0, {vr(vTmp2)}, vcc")
e("s_waitcnt lgkmcnt(2)")
mk_wa(1)
hilo(vMR+1, vTmp, vTmp3)
mfma32(accK, wa[1], xa, accK)
e(f"v_bfi_b32 {vr(vTmp)}, {sr(sT0)}, {vr(vTmp)}, {vr(vTmp3)}")
e(f"v_cndmask_b32 {vr(ra)}, 0, {vr(vTmp)}, vcc")
Rb = 128
e("s_waitcnt lgkmcnt(0)")
mk_wa(2)
mfma32(Rb, ra, one2)
mk_wa(0)
mfma32(accV, xa, wa[2], accV)
Kp, Vp, Qf = 144, 152, 8
for i in range(0, 6): e(f"v_mul_f32 {vr(accK+i)}, {vr(vMR+1)}, {vr(accK+i)}")
mfma32(accQ, wa[0], xa, accQ)
for i in range(6, 8): e(f"v_mul_f32 {vr(accK+i)}, {vr(vMR+1)}, {vr(accK+i)}")
for i in range(4): cvt(Kp+i, accK+2*i)
stws(Kp, sT2, 0)
e(f"v_mov_b32 {vr(90)}, {vr(vMR+1)}")
for i in range(8, 16, 2): pkmul_s(accK+i, accK+i, 90)
for i in range(4, 8): cvt(Kp+i, accK+2*i)
stws(Kp+4, sT2, 1024)
for u in range(2):
    for i in range(8*u, 8*u+8, 2): e(f"v_pk_mul_f32 {vr(accV+i,2)}, {vr(accV+i,2)}, {vr(Rb+i,2)}")
    for i in range(4*u, 4*u+4): cvt(Vp+i, accV+2*i)
    stws(Vp+4*u, sT2, 2048+1024*u)
e(f"v_add_u32 {vr(vTmp3)}, {8*TS}, {vr(vKa)}")
for i, o in enumerate(KOFF + VOFF): wr128(vTmp3, Kp+4*i, o)
e(f"v_mul_f32 {vr(90)}, {f32(0.25*1.4426950408889634)}, {vr(90)}")
for i in range(0, 16, 2): pkmul_s(accQ+i, accQ+i, 90)
for i in range(8): cvt(Qf+i, accQ+2*i)
e(f"s_add_u32 {sr(sT0)}, {sr(sRid)}, {M_KV}")
push(P_KV, vPk, sT0, 4)
stamp(3)
for hd in range(2): mfma32(S[hd], Kf[hd], Qf+4*hd)
sN, sOff = sT6, sT7
e(f"s_min_u32 {sr(sN)}, {sr(sTile)}, 7")
e(f"s_sub_u32 {sr(sOff)}, 8, {sr(sN)}")
e(f"s_mul_i32 {sr(sOff)}, {sr(sOff)}, {TS}")
e(f"v_add_u32 {vr(vKl)}, {sr(sOff)}, {vr(vKa)}")
for hd in range(2):
    for i in range(16): e(f"v_mov_b32 {vr(EE[hd]+i)}, 0xff800000")
e(f"s_add_u32 {sr(sT0)}, {sr(sRb)}, {sr(sW)}")
e(f"s_sub_u32 {sr(sT0)}, {sr(sT0)}, 4")
e(f"s_lshl_b32 {sr(sT0)}, {sr(sT0)}, 4")
e(f"s_add_u32 {sr(sT0)}, {sr(sT0)}, {sr(sCq)}")
e(f"s_lshl_b32 {sr(sT0)}, {sr(sT0)}, 13")
e(f"s_add_u32 {sr(sT0)}, {sr(sT0)}, {KV}")
e(f"s_mul_i32 {sr(sT2)}, {sr(sW)}, {4*REC}")
e(f"s_cmp_eq_u32 {sr(sRb)}, 0")
e("s_cbranch_scc1 Lnohalo")
e(f"s_min_u32 {sr(sT1)}, {sr(sRb)}, 4")
e(f"s_lshr_b32 {sr(sT1)}, 0xf0, {sr(sT1)}")
e(f"s_and_b32 {sr(sT1)}, {sr(sT1)}, 15")
gather(G_KV, M_KV, sRid, sr(sT1))
stamp(16)
e(f"s_add_u32 {sr(sT1)}, {sr(sRb)}, {sr(sW)}")
e(f"s_cmp_lt_u32 {sr(sT1)}, 4")
e("s_cbranch_scc1 Lnohalo")
for tl in range(2):
    for hp in range(2):
        for i, o in enumerate(KOFF + VOFF):
            dma(vL16, SWS, sT0, sT2, (tl*2+hp)*REC + o, off=i*1024, fl="sc1")
        e(f"s_add_u32 {sr(sT0)}, {sr(sT0)}, {4096 if hp == 0 else 65536-4096}")
lab("Lnohalo")
e("s_waitcnt vmcnt(0)")
signal(C_HALO)
for g in range(4):
    e(f"buffer_load_dwordx2 {vr(vXr+2*g,2)}, {vr(vRow)}, {sr(SX,4)}, {sr(sXO)} offen offset:{16*g}")
e(f"v_lshrrev_b32 {vr(vTmp2)}, 9, {vr(vRow)}")
e(f"s_lshl_b32 {sr(sT0)}, {sr(sTile)}, 6")
e(f"buffer_load_ushort {vr(vB2)}, {vr(vTmp2)}, {sr(SB2,4)}, {sr(sT0)} offen")
lwait(C_HALO, 8)
stamp(4)
for hd in range(2): rd128(Kx[hd], vKa, KOFF[hd])
for hd in range(2): rd128(Kf[hd], vKl, KOFF[hd])
e(f"s_cmp_lt_u32 {sr(sRb)}, 4")
e("s_cbranch_scc1 Lnofirst")
e("s_waitcnt lgkmcnt(2)")
for hd in range(2): mfma32(EE[hd], Kx[hd], Qf+4*hd)
lab("Lnofirst")
e("s_waitcnt lgkmcnt(0)")
mfma32(OA[0], Kf[0], Qf)
rd128(Kf[0], vKl, TS+KOFF[0])
for hd in range(2):
    for r in range(16): e(f"v_cndmask_b32 {vr(EE[hd]+r)}, {vr(EE[hd]+r)}, {vr(S[hd]+r)}, {sr(sMask+2*r,2)}")
def maxblk(m, src, first=False):
    if first:
        e(f"v_max3_f32 {vr(m)}, {vr(src)}, {vr(src+1)}, {vr(src+2)}")
        for i in range(3, 15, 2): e(f"v_max3_f32 {vr(m)}, {vr(src+i)}, {vr(src+i+1)}, {vr(m)}")
        e(f"v_max_f32 {vr(m)}, {vr(src+15)}, {vr(m)}")
    else:
        for i in range(0, 16, 2): e(f"v_max3_f32 {vr(m)}, {vr(src+i)}, {vr(src+i+1)}, {vr(m)}")
for hd in range(2): maxblk(mx[hd], EE[hd], True)
e(f"s_cmp_eq_u32 {sr(sN)}, 0")
e("s_cbranch_scc1 Lpass1done")
e(f"s_mov_b32 {sr(sT0)}, {sr(sN)}")
lab("Lpass1")
e("s_waitcnt lgkmcnt(1)")
mfma32(OA[1], Kf[1], Qf+4)
rd128(Kf[1], vKl, TS+KOFF[1])
maxblk(mx[0], OA[0])
e("s_waitcnt lgkmcnt(1)")
mfma32(OA[0], Kf[0], Qf)
rd128(Kf[0], vKl, 2*TS+KOFF[0])
e(f"v_add_u32 {vr(vKl)}, {TS}, {vr(vKl)}")
e(f"s_sub_u32 {sr(sT0)}, {sr(sT0)}, 1")
maxblk(mx[1], OA[1])
e(f"s_cmp_lg_u32 {sr(sT0)}, 0")
e("s_cbranch_scc1 Lpass1")
lab("Lpass1done")
stamp(17)
e(f"v_add_u32 {vr(vKl)}, {sr(sOff)}, {vr(vKa)}")
e("s_waitcnt lgkmcnt(0)")
for hd in range(2): rd128(Kf[hd], vKl, KOFF[hd])
for hd in range(2):
    e(f"v_add_u32 {vr(vVl[hd])}, {8*TS}, {vr(vVa[hd])}")
    for u in range(2): rd128(Vf[hd][u], vVl[hd], VOFF[u])
    for u in range(2): rd128(Vx[hd][u], vVa[hd], VOFF[u])
    e(f"v_add_u32 {vr(vVl[hd])}, {sr(sOff)}, {vr(vVa[hd])}")
for hd in range(2):
    halfop(mx[hd], vTmp, "v_max_f32")
    e(f"v_sub_f32 {vr(NM[hd])}, 0, {vr(mx[hd])}")
    e(f"v_mov_b32 {vr(NM[hd]+1)}, {vr(NM[hd])}")
    for i in range(2, 16, 2): e(f"v_mov_b64 {vr(NM[hd]+i,2)}, {vr(NM[hd],2)}")
for hd in range(2):
    for i in range(0, 16, 2): pkadd(EE[hd]+i, EE[hd]+i, NM[hd])
e("s_waitcnt lgkmcnt(0)")
mfma32(S[0], Kf[0], Qf, NM[0])
rd128(Kf[0], vKl, TS+KOFF[0])
def edge(hd, mf):
    for i in range(16):
        e(f"v_exp_f32 {vr(EE[hd]+i)}, {vr(EE[hd]+i)}")
        if i % 4 == 0 and mf: mf.pop(0)()
    for j in range(8): cvt(PF[hd]+j, EE[hd]+2*j)
    for j in range(8): e(f"v_and_b32 {vr(P[hd]+j)}, {vr(PF[hd]+j)}, {vr(MK+j)}")
    for j in range(8): e(f"v_xor_b32 {vr(PF[hd]+j)}, {vr(PF[hd]+j)}, {vr(P[hd]+j)}")
edge(0, [])
edge(1, [lambda: mfma32(OA[0], Vf[0][0], P[0]), lambda: mfma32(OA[0], Vf[0][1], P[0]+4, OA[0]),
         lambda: [rd128(Vf[0][u], vVl[0], VOFF[u]) for u in range(2)]])
e(f"s_cmp_lt_u32 {sr(sRb)}, 4")
e("s_cbranch_scc1 Lnofirst2")
mfma32(OA[0], Vx[0][0], PF[0], OA[0])
mfma32(OA[1], Vx[1][0], PF[1])
mfma32(OA[0], Vx[0][1], PF[0]+4, OA[0])
mfma32(OA[1], Vx[1][1], PF[1]+4, OA[1])
e("s_branch Lfirst2done")
lab("Lnofirst2")
for i in range(16): e(f"v_mov_b32 {vr(OA[1]+i)}, 0")
lab("Lfirst2done")
stamp(18)
e(f"s_cmp_eq_u32 {sr(sN)}, 0")
e("s_cbranch_scc1 Lpass2done")
e(f"s_mov_b32 {sr(sT0)}, {sr(sN)}")
lab("Lpass2")
for hd in range(2):
    o = 1 - hd
    def ex(a, b):
        for i in range(a, b): e(f"v_exp_f32 {vr(S[hd]+i)}, {vr(S[hd]+i)}")
    e("s_waitcnt lgkmcnt(3)")
    mfma32(S[o], Kf[o], Qf+4*o, NM[o])
    rd128(Kf[o], vKl, (TS if hd == 0 else 2*TS)+KOFF[o])
    ex(0, 4)
    mfma32(OA[o], Vf[o][0], P[o], OA[o])
    ex(4, 8)
    mfma32(OA[o], Vf[o][1], P[o]+4, OA[o])
    for u in range(2): rd128(Vf[o][u], vVl[o], (0 if hd == 0 else TS)+VOFF[u])
    ex(8, 16)
    if hd == 1:
        e(f"v_add_u32 {vr(vKl)}, {TS}, {vr(vKl)}")
        for h2 in range(2): e(f"v_add_u32 {vr(vVl[h2])}, {TS}, {vr(vVl[h2])}")
        e(f"s_sub_u32 {sr(sT0)}, {sr(sT0)}, 1")
        e(f"s_cmp_lg_u32 {sr(sT0)}, 0")
    for j in range(8): cvt(P[hd]+j, S[hd]+2*j)
e("s_cbranch_scc1 Lpass2")
lab("Lpass2done")
stamp(19)
e("s_waitcnt lgkmcnt(0)")
mfma32(OA[1], Vf[1][0], P[1], OA[1])
mfma32(OA[1], Vf[1][1], P[1]+4, OA[1])
e(f"s_lshl_b32 {sr(sT0)}, {sr(sRec)}, 11")
e(f"s_add_u32 {sr(sT0)}, {sr(sT0)}, {OB}")
for hd in range(2):
    val = OA[hd] + 8*hd; sm = OA[hd] + 8*(1-hd)
    e(f"v_rcp_f32 {vr(sm)}, {vr(sm)}")
    if hd == 0:
        for i in range(8): e(f"v_mul_f32 {vr(val+i)}, {vr(sm)}, {vr(val+i)}")
    else:
        for i in range(0, 8, 2): pkmul_s(val+i, val+i, sm)
    for j in range(4): cvt(16+4*hd+j, val+2*j)
    stws(16+4*hd, sT0, 1024*hd)
signal(C_ATT)
vTrP, vTa, vPo = 8, [9, 10], 15
e(f"v_lshrrev_b32 {vr(vTmp2)}, 5, {vr(vLane)}")
e(f"v_lshl_add_u32 {vr(vTrP)}, {vr(vTmp2)}, 9, {vr(vTrA)}")
e(f"s_lshl_b32 {sr(sT1)}, {sr(sHi)}, 15")
e(f"s_add_u32 {sr(sT1)}, {sr(sT1)}, {WOL}")
e(f"s_lshl_b32 {sr(sT2)}, {sr(sHi)}, 6")
e(f"v_xor_b32 {vr(vTa[0])}, {sr(sT2)}, {vr(vTrP)}")
e(f"v_add_u32 {vr(vTa[0])}, {sr(sT1)}, {vr(vTa[0])}")
e(f"v_xor_b32 {vr(vTa[1])}, 64, {vr(vTa[0])}")
e(f"v_lshlrev_b32 {vr(vPo)}, 7, {vr(vLane)}")
sRowMb = sT5
e(f"s_lshl_b32 {sr(sRowMb)}, {sr(sRb)}, 10")
e(f"s_lshl_b32 {sr(sT1)}, {sr(sCq)}, 2")
e(f"s_add_u32 {sr(sRowMb)}, {sr(sRowMb)}, {sr(sT1)}")
e(f"s_add_u32 {sr(sT0)}, {sr(sRowMb)}, {M_O}")
H, HO, Of, Wf = 16, 32, 48, 112
lwait(C_WOR, 4)
def wo_rd(t0, t1):
    for t in range(t0, t1):
        for dh in range(2):
            for r in range(2): trr(Wf+8*t+4*dh+2*r, vTa[dh], t*2048 + r*1024)
wo_rd(0, 8)
push(P_O, vPo, sT0, 8)
stamp(5)
wo_rd(8, 16)
e(f"s_lshl_b32 {sr(sT4)}, {sr(sTile)}, 1")
e(f"s_add_u32 {sr(sT4)}, {sr(sT4)}, {sr(sHi)}")
e(f"s_lshl_b32 {sr(sT4)}, {sr(sT4)}, 14")
e(f"s_add_u32 {sr(sT4)}, {sr(sT4)}, {OB}")
for k in range(8):
    e(f"v_lshlrev_b32 {vr(H+2*k)}, 16, {vr(vXr+k)}")
    e(f"v_and_b32 {vr(H+2*k+1)}, 0xffff0000, {vr(vXr+k)}")
vXw, vXrd, vXf = 11, 12, 13
def xch_addr(px):
    e(f"s_xor_b32 {sr(sT0)}, {sr(sW)}, {px}")
    e(f"s_lshl_b32 {sr(sT2)}, {sr(sT0)}, 2")
    e(f"v_add_u32 {vr(vXf)}, {sr(sT2)}, {vr(vCnt)}")
    e(f"s_lshl_b32 {sr(sT0)}, {sr(sT0)}, 12")
    e(f"v_add_u32 {vr(vXw)}, {sr(sT0)}, {vr(vL16)}")
    e(f"s_lshl_b32 {sr(sT1)}, {sr(sW)}, 12")
    e(f"v_add_u32 {vr(vXrd)}, {sr(sT1)}, {vr(vL16)}")
    e(f"s_lshl_b32 {sr(sT2)}, {sr(sW)}, 2")
    e(f"v_add_u32 {vr(14)}, {sr(sT2)}, {vr(vCnt)}")
def exchange(c, send, recv):
    for g in range(4): wr128(vXw, send+4*g, SCR+1024*g)
    signal(c, vXf)
    lwait(c, 1, vaddr=14)
    for g in range(4): rd128(recv+4*g, vXrd, SCR+1024*g)
xch_addr(2)
e("s_waitcnt lgkmcnt(0)")
signal(C_WO)
gather(G_O, M_O, sRid, 0xff)
stamp(6)
for i in range(16):
    ldws(Of+4*i, sT4, (i&3)*1024)
    if i & 3 == 3 and i < 15: e(f"s_add_u32 {sr(sT4)}, {sr(sT4)}, 4096")
for t in range(16):
    e(f"s_waitcnt vmcnt({15-t})")
    mfma32(HO, Wf+8*t+4, Of+4*t, None if t == 0 else HO)
    mfma32(H, Wf+8*t, Of+4*t, H)
stamp(20)
e(f"s_lshl_b32 {sr(sT4)}, {sr(sRec)}, 9")
e(f"s_add_u32 {sr(sT4)}, {sr(sT4)}, {ST}")
G = 64
e(f"v_mov_b32 {vr(G+2)}, {vr(vEp)}")
e(f"v_mov_b32 {vr(G+3)}, {vr(vEp)}")
exchange(C_X1, HO, 48)
e(f"s_add_u32 {sr(sT0)}, {sr(sRowMb)}, {M_ST}")
e("s_waitcnt lgkmcnt(0)")
for i in range(0, 16, 2): pkadd(H+i, H+i, 48+i)
pkadd(68, H, H+2)
e(f"v_pk_mul_f32 {vr(70,2)}, {vr(H,2)}, {vr(H,2)}")
e(f"v_pk_fma_f32 {vr(70,2)}, {vr(H+2,2)}, {vr(H+2,2)}, {vr(70,2)}")
for i in range(4, 16, 2):
    pkadd(68, 68, H+i)
    e(f"v_pk_fma_f32 {vr(70,2)}, {vr(H+i,2)}, {vr(H+i,2)}, {vr(70,2)}")
e(f"v_add_f32 {vr(G)}, {vr(68)}, {vr(69)}")
e(f"v_add_f32 {vr(G+1)}, {vr(70)}, {vr(71)}")
halfop(G, 68)
halfop(G+1, 69)
e("s_mov_b32 exec_hi, 0")
stws(G, sT4)
push(P_ST, vPo, sT0, 8, drain=None)
stamp(7)
e(f"s_lshl_b32 {sr(sT0)}, {sr(sTile)}, 13")
e(f"s_add_u32 {sr(sT0)}, {sr(sT0)}, {ST}")
e(f"s_add_u32 {sr(sT1)}, {sr(sT0)}, 4096")
gather(G_ST, M_ST, sRid, 0xff)
lst = spin_head()
for u in range(8): ldws(72+4*u, sT0 if u < 4 else sT1, (u&3)*1024)
for u in range(8):
    e(f"s_waitcnt vmcnt({7-u})")
    if u == 0: e(f"v_xor_b32 {vr(vTmp)}, {vr(vEp)}, {vr(72+2)}")
    else:
        e(f"v_xor_b32 {vr(vTmp2)}, {vr(vEp)}, {vr(72+4*u+2)}")
        e(f"v_or_b32 {vr(vTmp)}, {vr(vTmp)}, {vr(vTmp2)}")
        pkadd(72, 72, 72+4*u)
e(f"v_cmp_ne_u32 vcc, 0, {vr(vTmp)}")
spin_tail(lst)
stamp(8)
halfop(72, 74)
halfop(73, 75)
e(f"v_mul_f32 {vr(72)}, {f32(1.0/512)}, {vr(72)}")
e(f"v_mul_f32 {vr(73)}, {f32(1.0/512)}, {vr(73)}")
e(f"v_fma_f32 {vr(73)}, -{vr(72)}, {vr(72)}, {vr(73)}")
e(f"v_max_f32 {vr(73)}, 0, {vr(73)}")
e(f"v_add_f32 {vr(74)}, {f32(1e-5)}, {vr(73)}")
e(f"v_rsq_f32 {vr(74)}, {vr(74)}")
e(f"s_lshl_b32 {sr(sT1)}, {sr(sW)}, 12")
e(f"v_mul_f32 {vr(73)}, {vr(73)}, {vr(74)}")
e(f"v_mul_f32 {vr(73)}, {vr(73)}, {vr(74)}")
e(f"v_add_f32 {vr(73)}, {f32(1e-5)}, {vr(73)}")
e(f"v_rsq_f32 {vr(73)}, {vr(73)}")
e(f"v_lshrrev_b32 {vr(vTmp)}, 4, {vr(vRow)}")
e(f"v_mul_f32 {vr(74)}, {vr(74)}, {vr(73)}")
e(f"v_mul_f32 {vr(72)}, -{vr(72)}, {vr(74)}")
e(f"v_and_b32 {vr(vTmp2)}, 8, {vr(vRow)}")
e(f"v_add3_u32 {vr(vTmp)}, {vr(vTmp)}, {vr(vTmp2)}, {sr(sT1)}")
e(f"v_add_u32 {vr(vTmp2)}, {sr(sT1)}, {vr(vTrB)}")
for g in range(4):
    for i in (4*g, 4*g+2):
        e(f"v_pk_fma_f32 {vr(32+i,2)}, {vr(H+i,2)}, {vr(74,2)}, {vr(72,2)} op_sel_hi:[1,0,0]")
    cvt(48+2*g, 32+4*g); cvt(49+2*g, 34+4*g)
    e(f"ds_write_b64 {vr(vTmp)}, {vr(48+2*g,2)} offset:{SCR+16*g}")
for k in range(2):
    for r in range(2): trr(56+4*k+2*r, vTmp2, SCR + k*1024 + r*256)
e(f"s_lshl_b32 {sr(sT0)}, {sr(sCq)}, 1")
e(f"s_add_u32 {sr(sT0)}, {sr(sT0)}, {sr(sHi)}")
e(f"s_lshl_b32 {sr(sT0)}, {sr(sT0)}, 6")
e(f"s_add_u32 {sr(sT0)}, {sr(sT0)}, {sr(sTile)}")
e(f"s_lshl_b32 {sr(sT1)}, {sr(sT0)}, 11")
e(f"s_add_u32 {sr(sT1)}, {sr(sT1)}, {HN}")
e("s_waitcnt lgkmcnt(2)")
stws(56, sT1, 0)
e("s_waitcnt lgkmcnt(0)")
stws(60, sT1, 1024)
e(f"v_lshrrev_b32 {vr(vTmp2)}, 1, {vr(vLane)}")
e(f"v_and_b32 {vr(vTmp3)}, 128, {vr(vPo)}")
e(f"v_lshl_add_u32 {vr(vTmp2)}, {vr(vTmp2)}, 11, {vr(vTmp3)}")
e(f"s_lshl_b32 {sr(sT0)}, {sr(sCq)}, 8")
e(f"s_lshl_b32 {sr(sT1)}, {sr(sRb)}, 2")
e(f"s_add_u32 {sr(sT0)}, {sr(sT0)}, {sr(sT1)}")
e(f"s_add_u32 {sr(sT0)}, {sr(sT0)}, {M_HN}")
e(f"v_lshlrev_b32 {vr(vB2)}, 16, {vr(vB2)}")
for i in range(16): e(f"v_add_f32 {vr(H+i)}, {vr(H+i)}, {vr(vB2)}")
push(P_HN, vTmp2, sT0, 30)
stamp(9)
NB4, NA4 = 14, 18
UA = [32, 48, 64]
sWp, sHp = sT4, sT5
e(f"s_cmp_eq_u32 {sr(sFb)}, 15")
e("s_cbranch_scc1 LA4skip")
e("s_setprio 0")
e(f"s_lshl_b32 {sr(sT0)}, {sr(sFb)}, 2")
e(f"s_add_u32 {sr(sT0)}, {sr(sT0)}, {sr(sW)}")
e(f"s_mul_i32 {sr(sWp)}, {sr(sT0)}, {32*3072}")
e(f"s_add_u32 {sr(sWp)}, {sr(sWp)}, {W1P + NB4*3072}")
lwait(G_W1, 1)
RD = 10
def a4(t): return 80 + 16*(t % RD)
q = Q()
def a4_w(t, b):
    if NOPF: return
    ldws(a4(t)+4*b, sWp, b*1024); q.add(("w", t, b))
    if b == 2: e(f"s_add_u32 {sr(sWp)}, {sr(sWp)}, 3072")
def a4_h(t):
    ldws(a4(t)+12, sHp, (t & 3)*1024); q.add(("h", t))
    if t & 3 == 3: e(f"s_add_u32 {sr(sHp)}, {sr(sHp)}, 4096")
for t in range(RD):
    for b in range(3): a4_w(t, b)
e(f"s_lshl_b32 {sr(sT0)}, {sr(sDt)}, 2")
e(f"s_add_u32 {sr(sT0)}, {sr(sT0)}, {sr(sW)}")
e(f"s_lshl_b32 {sr(sHp)}, {sr(sT0)}, 15")
e(f"s_add_u32 {sr(sHp)}, {sr(sHp)}, {HN + NB4*1024}")
lwait(G_HN, 1)
stamp(10)
for t in range(RD): a4_h(t)
for t in range(NA4):
    e(f"s_waitcnt vmcnt({q.n(('h',t),('w',t,2))})")
    for b in range(3):
        mfma32(UA[b], a4(t)+4*b, a4(t)+12, None if t == 0 else UA[b])
        if t + RD < NA4: a4_w(t+RD, b)
    if t + RD < NA4: a4_h(t+RD)
e(f"s_mul_i32 {sr(sT0)}, {sr(sW)}, 3072")
e(f"v_add_u32 {vr(vTmp3)}, {sr(sT0)}, {vr(vL16)}")
lwait(C_BR, 4)
stamp(11)
for qq in range(12): wr128(vTmp3, 32+4*qq, SCR + (qq//3)*12288 + (qq%3)*1024)
lab("LA4skip")
e("s_waitcnt lgkmcnt(0)")
e("s_barrier")
vB = [[9, 10], [15, 247]]
e(f"s_lshl_b32 {sr(sT2)}, {sr(sLo)}, 6")
e(f"v_xor_b32 {vr(vTmp)}, {sr(sT2)}, {vr(vTrP)}")
e(f"v_xor_b32 {vr(vTmp2)}, 64, {vr(vTmp)}")
for bi, (base, stride) in enumerate(((R2, 16*2048), (R1, 11*2048))):
    e(f"s_mul_i32 {sr(sT2)}, {sr(sLo)}, {stride}")
    e(f"s_add_u32 {sr(sT2)}, {sr(sT2)}, {base}")
    e(f"v_add_u32 {vr(vB[bi][0])}, {sr(sT2)}, {vr(vTmp)}")
    e(f"v_add_u32 {vr(vB[bi][1])}, {sr(sT2)}, {vr(vTmp2)}")
def w5(j): return 112 + 8*j if j < 16 else 96 + 8*(j & 1)
def w2_rd(j):
    bi, base = (1, R1) if 16 <= j < 27 else (0, R2)
    return [(lambda k=k, r=r: trr(w5(j)+4*k+2*r, vB[bi][k], w2addr(0, j)-base + r*1024)) for k in (1, 0) for r in range(2)]
lwait(C_BD, 4)
for j in range(16):
    for f in w2_rd(j): f()
e("s_waitcnt lgkmcnt(0)")
signal(C_ER)
e("s_setprio 2")
e(f"s_lshl_b32 {sr(sT0)}, {sr(sCq)}, 1")
e(f"s_add_u32 {sr(sT0)}, {sr(sT0)}, {sr(sHi)}")
e(f"s_mul_i32 {sr(sT4)}, {sr(sT0)}, {96*1024}")
e(f"s_mul_i32 {sr(sT2)}, {sr(sLo)}, {43*1024}")
e(f"s_add_u32 {sr(sT4)}, {sr(sT4)}, {sr(sT2)}")
e(f"s_add_u32 {sr(sT4)}, {sr(sT4)}, {UB}")
xch_addr(1)
stamp(12)
gather(G_U, M_U, sRid, 0x3fffffff)
stamp(13)
UD = 12
def u5(j): return 48 + 4*(j % UD)
def u_ld(j):
    ldws(u5(j), sT4, (j & 3)*1024)
    if j & 3 == 3: e(f"s_add_u32 {sr(sT4)}, {sr(sT4)}, 4096")
for j in range(UD): u_ld(j)
for j in range(43):
    nxt = w2_rd(j+1) if 16 <= j+1 < 43 else []
    if j == 25: lwait(C_W2, 4)
    e(f"s_waitcnt vmcnt({min(UD-1, 42-j)})" + (" lgkmcnt(2)" if j >= 16 else ""))
    mfma32(HO, u5(j), w5(j)+4, None if j == 0 else HO)
    for f in nxt[:2]: f()
    if j >= 16: e(f"s_waitcnt lgkmcnt({len(nxt[:2])})")
    mfma32(H, u5(j), w5(j), H)
    for f in nxt[2:]: f()
    if j + UD < 43: u_ld(j+UD)
stamp(14)
exchange(C_X2, HO, 48)
e("s_waitcnt lgkmcnt(0)")
for g in range(4):
    pkadd(H+4*g, H+4*g, 48+4*g); pkadd(H+4*g+2, H+4*g+2, 50+4*g)
    cvt(64+2*g, H+4*g); cvt(65+2*g, H+4*g+2)
    e(f"buffer_store_dwordx2 {vr(64+2*g,2)}, {vr(vRow)}, {sr(SOUT,4)}, {sr(sXO)} offen offset:{16*g}")
e(f"s_or_b32 {sr(sT0)}, s2, {sr(sW)}")
e(f"s_cmp_lg_u32 {sr(sT0)}, 0")
e("s_cbranch_scc1 Lnoep")
e("s_mov_b64 exec, 1")
e(f"buffer_store_dword {vr(vEp)}, {vr(vL4)}, {sr(SWS,4)}, 0 offen")
e("s_mov_b64 exec, -1")
lab("Lnoep")
prof_out()
e("s_endpgm")
LA_CODE = L[:]; del L[:]

vDx, vDw = [8, 9], 10
e(f"v_lshrrev_b32 {vr(vTmp)}, 3, {vr(vLane)}")
e(f"v_and_b32 {vr(vTmp2)}, 7, {vr(vLane)}")
e(f"v_lshrrev_b32 {vr(vTmp3)}, 1, {vr(vTmp)}")
e(f"s_lshl_b32 {sr(sT0)}, {sr(sW)}, 4")
e(f"v_add_u32 {vr(vTmp)}, {sr(sT0)}, {vr(vTmp)}")
e(f"v_xor_b32 {vr(vDx[0])}, {vr(vTmp2)}, {vr(vTmp3)}")
e(f"v_lshlrev_b32 {vr(vDx[0])}, 4, {vr(vDx[0])}")
e(f"v_lshl_add_u32 {vr(vDx[0])}, {vr(vTmp)}, 10, {vr(vDx[0])}")
e(f"v_xor_b32 {vr(vDx[1])}, 64, {vr(vDx[0])}")
e(f"v_add_u32 {vr(vDx[1])}, 8192, {vr(vDx[1])}")
e(f"v_mul_u32_u24 {vr(vDw)}, 3072, {vr(vTmp)}")
e(f"v_add_u32 {vr(vDw)}, {vr(vDw)}, {vr(vSw)}")
sWl, sXo, sWo = sT7, sT5, sT6
sKc, sLd, sA, sBq, sPair, sStg, sWoB = 64, 65, 66, 67, 68, 69, 70
e(f"s_lshl_b32 {sr(sWl)}, {sr(sW)}, 11")
e(f"s_lshl_b32 {sr(sXo)}, {sr(sRb)}, 16")
e(f"s_lshl_b32 {sr(sWo)}, {sr(sCq)}, 7")
e(f"s_and_b32 {sr(sKc)}, {sr(sRot)}, 7")
e(f"s_mov_b32 {sr(sLd)}, {sr(sWl)}")
pre = [f"s_lshl_b32 {sr(sA)}, {sr(sKc)}, 7", f"s_add_u32 {sr(sA)}, {sr(sA)}, {sr(sXo)}",
       f"s_mul_i32 {sr(sBq)}, {sr(sKc)}, {64*3072}", f"s_add_u32 {sr(sBq)}, {sr(sBq)}, {sr(sWo)}"]
d = [lambda: dma(vDx[0], SX, sA, sLd, 0), lambda: dma(vDx[1], SX, sA, sLd, 1024)]
for sec in (1, 2, 0): d.append(lambda sec=sec: dma(vDw, SWQKV, sBq, sLd, 8192 + sec*8192, off=sec*1024))
for i, sec in enumerate((1, 2, 0)):
    d.append(lambda sec=sec, i=i: dma(vDw, SWQKV, sBq, sLd, 8192 + sec*8192 + 1024, off=sec*1024,
                                      mid=(f"s_add_u32 {sr(sBq)}, {sr(sBq)}, {8*3072}" if i == 0 else None)))
def dadv():
    e(f"s_add_u32 {sr(sKc)}, {sr(sKc)}, 1")
    e(f"s_and_b32 {sr(sKc)}, {sr(sKc)}, 7")
    e(f"s_add_u32 {sr(sLd)}, {sr(sLd)}, {SLOT}")
    e(f"s_cmp_ge_u32 {sr(sLd)}, {3*SLOT}")
    e(f"s_cselect_b32 {sr(sLd)}, {sr(sWl)}, {sr(sLd)}")
    for x in pre: e(x)
for x in pre: e(x)
e("s_waitcnt lgkmcnt(0)")
for f in d: f()
dadv()
setup2()
for f in d: f()
dadv()
xs = [44, 48]
As, Aq = [76, 78], [80, 82]
un = [84, 86]
vSx = 11
for i in range(76, 84): e(f"v_mov_b32 {vr(i)}, 0")
e(f"v_add_u32 {vr(vSx)}, {sr(sWl)}, {vr(vL16)}")
def stats_work():
    def xpart(u, i):
        t = un[i & 1]
        e(f"v_lshlrev_b32 {vr(t)}, 16, {vr(xs[u]+i)}")
        e(f"v_and_b32 {vr(t+1)}, 0xffff0000, {vr(xs[u]+i)}")
        for k in range(2):
            e(f"v_add_f32 {vr(As[u]+k)}, {vr(As[u]+k)}, {vr(t+k)}")
            e(f"v_fmac_f32 {vr(Aq[u]+k)}, {vr(t+k)}, {vr(t+k)}")
    def sadv():
        e(f"s_add_u32 {sr(sSlot)}, {sr(sSlot)}, 1")
        e(f"s_mov_b32 {sr(sT0)}, {SLOT}")
        e(f"s_cmp_eq_u32 {sr(sSlot)}, 3")
        e(f"s_cselect_b32 {sr(sT0)}, {(-2*SLOT) & 0xffffffff}, {sr(sT0)}")
        e(f"s_cselect_b32 {sr(sSlot)}, 0, {sr(sSlot)}")
        e(f"v_add_u32 {vr(vSx)}, {sr(sT0)}, {vr(vSx)}")
    return [lambda: [rd128(xs[0], vSx, 0), rd128(xs[1], vSx, 1024)], sadv,
            lambda: [e("s_waitcnt lgkmcnt(0)"), xpart(0, 0)], lambda: [xpart(0, 1), xpart(0, 2)], lambda: xpart(0, 3),
            lambda: [xpart(1, 0), xpart(1, 1)], lambda: xpart(1, 2), lambda: xpart(1, 3)]
e(f"s_mov_b32 {sr(sI)}, 0")
e(f"s_mov_b32 {sr(sSlot)}, 0")
epoch_fin()
e("s_setprio 3")
lab("LB1")
e("s_waitcnt vmcnt(8)")
e("s_barrier")
interleave(d, stats_work())
dadv()
e(f"s_add_u32 {sr(sI)}, {sr(sI)}, 1")
e(f"s_cmp_lt_u32 {sr(sI)}, 6")
e("s_cbranch_scc1 LB1")
vD1, vDo = 14, 15
e(f"v_lshrrev_b32 {vr(vTmp)}, 2, {vr(vLane)}")
e(f"v_mul_u32_u24 {vr(vTmp)}, 2752, {vr(vTmp)}")
e(f"v_and_b32 {vr(vD1)}, 0x30, {vr(vL16)}")
e(f"v_add_u32 {vr(vD1)}, {vr(vD1)}, {vr(vTmp)}")
e(f"s_lshl_b32 {sr(sPair)}, {sr(sDt)}, 2")
e(f"s_add_u32 {sr(sPair)}, {sr(sPair)}, {sr(sW)}")
e(f"s_mul_i32 {sr(sA)}, {sr(sPair)}, {32*2752}")
e(f"s_mul_i32 {sr(sT2)}, {sr(sFb)}, 192")
e(f"s_add_u32 {sr(sA)}, {sr(sA)}, {sr(sT2)}")
e(f"s_lshl_b32 {sr(sStg)}, {sr(sW)}, 14")
e(f"s_add_u32 {sr(sStg)}, {sr(sStg)}, {WOL}")
d1 = [lambda b=b: dma(vD1, SW1, sA, sStg, b*1024, off=b*64) for b in range(3)]
d1 += [lambda b=b: dma(vD1, SW1, sA, sStg, 3072 + b*1024, off=b*64, mid=(f"s_add_u32 {sr(sA)}, {sr(sA)}, {16*2752}" if b == 0 else None)) for b in range(3)]
e(f"v_lshrrev_b32 {vr(vTmp)}, 3, {vr(vLane)}")
e(f"v_lshl_add_u32 {vr(vDo)}, {vr(vTmp)}, 10, {vr(vSw)}")
e(f"s_lshl_b32 {sr(sWoB)}, {sr(sW)}, 17")
e(f"s_add_u32 {sr(sWoB)}, {sr(sWoB)}, {sr(sWo)}")
def wo_dma(i): dma(vDo, SWO, sT1, sStg, i*1024, mid=f"s_add_u32 {sr(sT1)}, {sr(sWoB)}, {i*8192}")
e(f"s_bfe_u32 {sr(sT1)}, s2, 0x30003")
e(f"s_lshl_b32 {sr(sT1)}, {sr(sT1)}, 16")
e(f"s_add_u32 {sr(sT1)}, {sr(sT1)}, {sr(sWo)}")
e(f"s_lshl_b32 {sr(sT2)}, {sr(sW)}, 14")
e(f"s_add_u32 {sr(sT1)}, {sr(sT1)}, {sr(sT2)}")
e(f"v_lshlrev_b32 {vr(vTmp2)}, 10, {vr(vLane)}")
e("s_mov_b64 exec, 0xffff")
e(f"buffer_load_dword {vr(90)}, {vr(vTmp2)}, {sr(SWO,4)}, {sr(sT1)} offen")
e("s_mov_b64 exec, -1")
for f in d1: f()
e("s_waitcnt vmcnt(15)")
e("s_barrier")
e(f"v_add_u32 {vr(vTmp)}, {vr(vL4)}, {vr(vCnt)}")
e(f"v_mov_b32 {vr(vTmp2)}, 0")
e("s_mov_b32 exec_hi, 0")
e(f"ds_write_b32 {vr(vTmp)}, {vr(vTmp2)}")
e("s_mov_b64 exec, -1")
for f in stats_work(): f()
e("s_waitcnt vmcnt(7)")
e("s_barrier")
for f in stats_work(): f()
for u in range(2):
    e(f"v_add_f32 {vr(As[u])}, {vr(As[u])}, {vr(As[u]+1)}")
    e(f"v_add_f32 {vr(Aq[u])}, {vr(Aq[u])}, {vr(Aq[u]+1)}")
for dp in ("quad_perm:[1,0,3,2]", "quad_perm:[2,3,0,1]", "row_half_mirror"):
    for v in (As[0], Aq[0], As[1], Aq[1]):
        e(f"v_add_f32 {vr(v)}, {vr(v)}, {vr(v)} {dp} row_mask:0xf bank_mask:0xf")
for u in range(2):
    e(f"v_mul_f32 {vr(As[u])}, {f32(-1.0/512)}, {vr(As[u])}")
    e(f"v_mul_f32 {vr(Aq[u])}, {f32(1.0/512)}, {vr(Aq[u])}")
    e(f"v_fma_f32 {vr(Aq[u])}, -{vr(As[u])}, {vr(As[u])}, {vr(Aq[u])}")
    e(f"v_max_f32 {vr(Aq[u])}, 0, {vr(Aq[u])}")
    e(f"v_add_f32 {vr(Aq[u])}, {f32(1e-5)}, {vr(Aq[u])}")
    e(f"v_rsq_f32 {vr(As[u]+1)}, {vr(Aq[u])}")
e(f"v_and_b32 {vr(vTmp2)}, 0x38, {vr(vLane)}")
e(f"s_lshl_b32 {sr(sT0)}, {sr(sW)}, 7")
e(f"s_add_u32 {sr(sT0)}, {sr(sT0)}, {SS}")
e(f"v_add_u32 {vr(vTmp2)}, {sr(sT0)}, {vr(vTmp2)}")
for u in range(2): e(f"ds_write_b64 {vr(vTmp2)}, {vr(As[u],2)} offset:{64*u}")
e("s_waitcnt lgkmcnt(0)")
e("s_barrier")
e("s_setprio 0")
stamp(2)
e(f"v_lshrrev_b32 {vr(vTmp2)}, 1, {vr(vLane)}")
e(f"v_mul_u32_u24 {vr(vTmp2)}, {REC}, {vr(vTmp2)}")
e(f"v_and_b32 {vr(vTmp3)}, 1, {vr(vLane)}")
e(f"v_mul_u32_u24 {vr(vTmp3)}, 1040, {vr(vTmp3)}")
e(f"v_add_u32 {vr(vTmp2)}, {vr(vTmp2)}, {vr(vTmp3)}")
for i in range(4): e(f"v_mov_b32 {vr(40+i)}, 0x3f803f80")
e("s_mov_b32 exec_hi, 0xff")
wr128(vTmp2, 40, 3072)
signal(C_HALO)
e(f"v_add_u32 {vr(vTmp3)}, {sr(sStg)}, {vr(vTrB)}")
e("s_waitcnt vmcnt(0)")
for i in range(6):
    for r in range(2): trr(16+4*i+2*r, vTmp3, i*1024 + r*256)
e(f"s_mul_i32 {sr(sA)}, {sr(sFb)}, {128*3072}")
e(f"s_mul_i32 {sr(sT2)}, {sr(sPair)}, 6144")
e(f"s_add_u32 {sr(sA)}, {sr(sA)}, {sr(sT2)}")
e(f"s_add_u32 {sr(sA)}, {sr(sA)}, {W1P}")
e(f"s_add_u32 {sr(sBq)}, {sr(sA)}, 3072")
stamp(3)
lwait(C_HALO, 8, sleep=1)
stamp(4)
for i in range(6):
    if not NOPF: stws(16+4*i, sA if i < 3 else sBq, (i % 3)*1024)
for i in range(16): wo_dma(i)
e(f"v_lshlrev_b32 {vr(vTmp2)}, 7, {vr(vLane)}")
e(f"s_lshl_b32 {sr(sT0)}, {sr(sFb)}, 11")
e(f"s_lshl_b32 {sr(sT1)}, {sr(sDt)}, 2")
e(f"s_add_u32 {sr(sT0)}, {sr(sT0)}, {sr(sT1)}")
e(f"s_add_u32 {sr(sT0)}, {sr(sT0)}, {M_W1}")
push(P_W1, vTmp2, sT0, 16, drain=16)
e(f"s_lshr_b32 {sr(sT1)}, s2, 6")
e(f"s_lshl_b32 {sr(sT1)}, {sr(sT1)}, 2")
e(f"s_add_u32 {sr(sT1)}, {sr(sT1)}, {sr(sW)}")
e(f"s_mul_i32 {sr(sT1)}, {sr(sT1)}, {86*4096}")
e(f"s_lshl_b32 {sr(sT2)}, {sr(sRb)}, 7")
e(f"s_add_u32 {sr(sT1)}, {sr(sT1)}, {sr(sT2)}")
e(f"v_lshlrev_b32 {vr(vTmp2)}, 12, {vr(vLane)}")
e("s_waitcnt vmcnt(0)")
signal(C_WOR)
e(f"buffer_load_dword {vr(90)}, {vr(vTmp2)}, {sr(SW2,4)}, {sr(sT1)} offen")
e(f"s_add_u32 {sr(sT1)}, {sr(sT1)}, {64*4096}")
e("s_mov_b64 exec, 0x3fffff")
e(f"buffer_load_dword {vr(91)}, {vr(vTmp2)}, {sr(SW2,4)}, {sr(sT1)} offen")
e("s_mov_b64 exec, -1")
stamp(5)
vD2 = 247
e(f"v_lshrrev_b32 {vr(vTmp)}, 3, {vr(vLane)}")
e(f"v_lshl_add_u32 {vr(vD2)}, {vr(vTmp)}, 12, {vr(vSw)}")
def b4(t, b): return 72 + 12*t + 4*b
UBa = [24, 40, 56]
e(f"s_cmp_eq_u32 {sr(sFb)}, 15")
e("s_cbranch_scc1 LBw1skip")
e(f"s_lshl_b32 {sr(sT0)}, {sr(sFb)}, 2")
e(f"s_add_u32 {sr(sT0)}, {sr(sT0)}, {sr(sW)}")
e(f"s_mul_i32 {sr(sWp)}, {sr(sT0)}, {32*3072}")
e(f"s_add_u32 {sr(sWp)}, {sr(sWp)}, {W1P}")
gather(G_W1, M_W1, sFid, 0xffff, sleep=1)
e("s_waitcnt vmcnt(0)")
stamp(8)
for t in range(NB4):
    for b in range(3):
        if not NOPF: ldws(b4(t, b), sWp, b*1024)
    e(f"s_add_u32 {sr(sWp)}, {sr(sWp)}, 3072")
e(f"v_and_b32 {vr(vTmp3)}, 8, {vr(vRow)}")
e(f"s_mul_i32 {sr(sT2)}, {sr(sFb)}, 192")
e(f"s_mul_i32 {sr(sT3)}, {sr(sW)}, 48")
e(f"s_add_u32 {sr(sT2)}, {sr(sT2)}, {sr(sT3)}")
for i in range(3): e(f"buffer_load_dwordx2 {vr(vXr+2*i,2)}, {vr(vTmp3)}, {sr(SB1,4)}, {sr(sT2)} offen offset:{16*i}")
lab("LBw1skip")
stamp(6)
lwait(C_ATT, 4, sleep=1)
w2_issue(16, 27, vD2)
e("s_waitcnt vmcnt(30)")
lwait(C_WO, 4, sleep=1)
w2_issue(0, 16, vD2)
stamp(7)
e(f"s_cmp_eq_u32 {sr(sFb)}, 15")
e("s_cbranch_scc1 LB4skip")
e(f"s_lshl_b32 {sr(sT0)}, {sr(sDt)}, 2")
e(f"s_add_u32 {sr(sT0)}, {sr(sT0)}, {sr(sW)}")
e(f"s_lshl_b32 {sr(sHp)}, {sr(sT0)}, 15")
e(f"s_add_u32 {sr(sHp)}, {sr(sHp)}, {HN}")
lwait(P_HN, 4, sleep=1)
e("s_setprio 3")
e("s_waitcnt vmcnt(0)")
gather(G_HN, M_HN, sFid, 0xffffffff)
stamp(10)
hdst = {}
free = [8, 12, 16, 20]
q = Q(); nxt = [0]
def b_h():
    t = nxt[0]; nxt[0] += 1
    hdst[t] = free.pop(0)
    ldws(hdst[t], sHp, (t & 3)*1024); q.add(t)
    if t & 3 == 3: e(f"s_add_u32 {sr(sHp)}, {sr(sHp)}, 4096")
for t in range(4): b_h()
for t in range(NB4):
    e(f"s_waitcnt vmcnt({q.n(t)})")
    for b in range(3):
        mfma32(UBa[b], b4(t, b), hdst[t], None if t == 0 else UBa[b])
        free.append(b4(t, b))
        if nxt[0] < NB4: b_h()
stamp(11)
e(f"s_mul_i32 {sr(sT0)}, {sr(sW)}, 3072")
e(f"v_add_u32 {vr(vTmp3)}, {sr(sT0)}, {vr(vL16)}")
for qq in range(12): wr128(vTmp3, 24+4*qq, SCR + (qq//3)*12288 + (qq%3)*1024)
signal(C_BW)
e(f"s_mul_i32 {sr(sT0)}, {sr(sW)}, 12288")
e(f"v_add_u32 {vr(vTmp3)}, {sr(sT0)}, {vr(vL16)}")
for i in range(6):
    e(f"v_lshlrev_b32 {vr(8+2*i)}, 16, {vr(vXr+i)}")
    e(f"v_and_b32 {vr(9+2*i)}, 0xffff0000, {vr(vXr+i)}")
lwait(C_BW, 4)
def red4(pk):
    for src in range(4):
        for i in range(3): rd128(80+12*src+4*i, vTmp3, SCR + src*3072 + i*1024)
    for src in range(4):
        e(f"s_waitcnt lgkmcnt({9-3*src})")
        if pk:
            for i in range(0, 12, 2): pkadd(8+i, 8+i, 80+12*src+i)
        else:
            for i in range(12): e(f"v_add_f32 {vr(8+i)}, {vr(8+i)}, {vr(80+12*src+i)}")
red4(False)
signal(C_BR)
C0 = -2.0*0.7978845608028654*1.4426950408889634
e(f"v_mov_b32 {vr(20)}, {f32(C0*0.044715)}")
e(f"v_mov_b32 {vr(22)}, {f32(C0)}")
e(f"s_mul_i32 {sr(sT0)}, {sr(sDt)}, {96*1024}")
e(f"s_mul_i32 {sr(sT1)}, {sr(sFb)}, 6144")
e(f"s_add_u32 {sr(sT0)}, {sr(sT0)}, {sr(sT1)}")
e(f"s_add_u32 {sr(sT0)}, {sr(sT0)}, {UB}")
for i in range(3):
    e(f"s_mul_i32 {sr(sT1)}, {sr(sW)}, 3")
    e(f"s_add_u32 {sr(sT1)}, {sr(sT1)}, {i}")
    e(f"s_and_b32 {sr(sT2)}, {sr(sT1)}, 1")
    e(f"s_lshl_b32 {sr(sT2)}, {sr(sT2)}, 3")
    e(f"s_lshr_b32 {sr(sT1)}, {sr(sT1)}, 1")
    e(f"s_lshl_b32 {sr(sT1)}, {sr(sT1)}, 10")
    e(f"s_add_u32 {sr(sT1)}, {sr(sT1)}, {sr(sT2)}")
    e(f"s_add_u32 {sr(64+i)}, {sr(sT1)}, {sr(sT0)}")
e(f"v_lshlrev_b32 {vr(48)}, 10, {vr(vLane)}")
e(f"s_lshr_b32 {sr(sT0)}, {sr(sDt)}, 1")
e(f"s_lshl_b32 {sr(sT0)}, {sr(sT0)}, 7")
e(f"s_and_b32 {sr(sT1)}, {sr(sDt)}, 1")
e(f"s_lshl_b32 {sr(sT1)}, {sr(sT1)}, 2")
e(f"s_add_u32 {sr(sT0)}, {sr(sT0)}, {sr(sT1)}")
e(f"s_lshl_b32 {sr(sT1)}, {sr(sFb)}, 3")
e(f"s_add_u32 {sr(sT0)}, {sr(sT0)}, {sr(sT1)}")
e(f"s_add_u32 {sr(67)}, {sr(sT0)}, {M_U}")
lab("LB4skip")
e("s_waitcnt vmcnt(0) lgkmcnt(0)")
e("s_barrier")
e(f"s_cmp_eq_u32 {sr(sFb)}, 15")
e("s_cbranch_scc1 LB4skip2")
stamp(12)
red4(True)
signal(C_BD)
for i in range(0, 12, 2): e(f"v_pk_mul_f32 {vr(24+i,2)}, {vr(8+i,2)}, {vr(8+i,2)}")
for i in range(0, 12, 2): e(f"v_pk_fma_f32 {vr(24+i,2)}, {vr(24+i,2)}, {vr(20,2)}, {vr(22,2)} op_sel_hi:[1,0,0]")
for i in range(0, 12, 2): e(f"v_pk_mul_f32 {vr(24+i,2)}, {vr(24+i,2)}, {vr(8+i,2)}")
for i in range(12): e(f"v_exp_f32 {vr(24+i)}, {vr(24+i)}")
for i in range(12): e(f"v_add_f32 {vr(24+i)}, 1.0, {vr(24+i)}")
for i in range(12): e(f"v_rcp_f32 {vr(24+i)}, {vr(24+i)}")
for i in range(3):
    for k in (4*i, 4*i+2): e(f"v_pk_mul_f32 {vr(8+k,2)}, {vr(8+k,2)}, {vr(24+k,2)}")
    cvt(40+2*i, 8+4*i); cvt(41+2*i, 10+4*i)
    e(f"buffer_store_dwordx2 {vr(40+2*i,2)}, {vr(vL16)}, {sr(SWS,4)}, {sr(64+i)} offen sc1")
push(P_U, 48, 67, 32)
stamp(13)
e("s_branch LB5")
lab("LB4skip2")
signal(C_BD)
lab("LB5")
e("s_setprio 0")
lwait(C_ER, 4)
w2_issue(27, 43, vD2)
e("s_waitcnt vmcnt(0)")
signal(C_W2)
prof_out()
lab("Lend")
e("s_endpgm")
L[:] = LHEAD + L + LA_CODE

body, nn = hz.fix(L, verbose="-v" in sys.argv)
hdr = open("cdna_kernels/" + NAME + ".s.ref").read().split("; Override launch")[0]
out = hdr + "; @launch grid=(256,1,1) block=(512,1,1) lds=163840\n"
out += f""".amdgcn_target "amdgcn-amd-amdhsa--gfx950"
.text
.globl {NAME}_kernel
.p2align 8
.type {NAME}_kernel,@function
{NAME}_kernel:
""" + "\n".join(body) + f"""
.section .rodata,"a"
.p2align 6
.amdhsa_kernel {NAME}_kernel
  .amdhsa_next_free_vgpr 256
  .amdhsa_next_free_sgpr 102
  .amdhsa_accum_offset 256
  .amdhsa_group_segment_fixed_size 0
  .amdhsa_kernarg_size 88
  .amdhsa_user_sgpr_count 2
  .amdhsa_user_sgpr_kernarg_segment_ptr 1
  .amdhsa_system_sgpr_workgroup_id_x 1
.end_amdhsa_kernel
"""
fn = [a for a in sys.argv[1:] if not a.startswith("-")][0]
open(fn, "w").write(out)
print(f"wrote {fn}: {len(body)} lines, {nn} nop states inserted")
```
